```python
import torch

def _softmax(x, axis=-1):
    return torch.softmax(x, dim=axis)
def _gelu(x):
    return torch.nn.functional.gelu(x, approximate="tanh")
def _silu(x):
    return torch.nn.functional.silu(x)
def _sigmoid(x):
    return torch.sigmoid(x)
def _layernorm(x, axis=-1, eps=1e-5):
    m = x.mean(dim=axis, keepdim=True)
    v = x.var(dim=axis, keepdim=True, unbiased=False)
    return (x - m) / torch.sqrt(v + eps)
def _scatter_add(tgt, idx, src, axis=0):
    return tgt.clone().index_add_(axis, idx, src)
def _segment_sum(src, seg, n):
    out = torch.zeros((n,) + src.shape[1:], dtype=src.dtype)
    return out.index_add_(0, seg, src)
def _pad(x, pw):
    flat = tuple(v for pair in reversed(pw) for v in pair)
    return torch.nn.functional.pad(x, flat)

kernel_name = 'standalone__gqa_softmax__near_ridge'

def setup_inputs():

    _w = (lambda a: (lambda t: t.to(torch.bfloat16) if t.is_floating_point() else t)(torch.as_tensor(a)))
    B, Hq, Hkv, Sq, Sk, D = 8, 16, 8, 96, 1024, 256
    return {
        "q": _w((lambda *s: torch.randn(*s, dtype=torch.bfloat16) * 0.8)(B, Hq, Sq, D)),
        "k": _w((lambda *s: torch.randn(*s, dtype=torch.bfloat16) * 0.8)(B, Hkv, Sk, D)),
        "v": _w((lambda *s: torch.randn(*s, dtype=torch.bfloat16) * 0.05)(B, Hkv, Sk, D)),
    }

def reference(q, k, v):
    B, Hq, Sq, D = q.shape
    Hkv = k.shape[1]
    rep = Hq // Hkv
    k = (lambda x, n, axis: torch.repeat_interleave(x, n, dim=axis))(k, rep, axis=1)
    v = (lambda x, n, axis: torch.repeat_interleave(x, n, dim=axis))(v, rep, axis=1)
    scale = D ** -0.5
    scores = torch.einsum("bhqd,bhkd->bhqk", q, k) * scale
    p = _softmax(scores, axis=-1)
    return torch.einsum("bhqk,bhkd->bhqd", p, v)
```

```python
import sys, struct
from asmlib import *

C_SCALE = 0.0625 * 1.4426950408889634
def f32bits(x): return struct.unpack("<I", struct.pack("<f", x))[0]

WBYTES = 40960
SLOT = 8192
NSLOT = 5

NOTES = """; GQA attention, two-phase per wave: S^T = K Q^T for the wave's 256 keys (registers), exact max,
"""

def gen(pol="", stamps=False, W=7, burst=True, opol="", qpol=""):
    a = Asm(); e = a.e
    vKd = [1, 2, 3, 4]; vKr = [5, 6, 7, 8]; vVd = [9, 10, 11, 12]; vVr = list(range(13, 21))
    vMx = [21, 22, 23]; vOnes = 24
    def S(kt, m, r=0): return 64 + (kt * 3 + m) * 4 + r
    def vr(b, n=4): return f"v[{b}:{b+n-1}]"
    def ar(b, n=4): return f"a[{b}:{b+n-1}]"
    def Q(m, s): return (m * 8 + s) * 4
    def O(j, m): return (j * 3 + m) * 4
    def Lr(m): return 192 + 4 * m
    def F(n): return 204 + 4 * (n % W)
    sQ, sK, sV, sO = "s[12:15]", "s[16:19]", "s[20:23]", "s[24:27]"
    sKb, sVb, sLds, sT, sC, sRow, sPar = "s28", ["s29", "s34"], "s30", "s31", "s32", "s33", "s35"
    MF = "v_mfma_f32_16x16x32_bf16"

    e("s_cmp_ge_u32 s2, 256"); e("s_cbranch_scc1 L_end")
    if stamps: e("s_memrealtime s[40:41]")
    e("s_load_dwordx4 s[4:7], s[0:1], 0"); e("s_load_dwordx4 s[8:11], s[0:1], 16")
    if stamps: e("s_load_dwordx2 s[44:45], s[0:1], 40")
    a.c("pull the kernel's code into L2")
    e("s_getpc_b64 s[36:37]")
    e("v_lshlrev_b32 v28, 7, v0")
    e("v_min_u32 v28, L_end - L_pc, v28")
    a.label("L_pc")
    a.vmem("global_load_dword v29, v28, s[36:37]", "code")
    e("v_lshrrev_b32 v30, 6, v0"); e("v_and_b32 v0, 63, v0")
    e("v_readfirstlane_b32 s3, v30")
    a.c("workgroup -> (kv group, 48-row quarter); ids equal mod 8 share K/V")
    e("s_and_b32 s38, s2, 7"); e("s_lshr_b32 s39, s2, 5"); e("s_lshl_b32 s39, s39, 3"); e("s_add_u32 s38, s38, s39")
    e("s_lshr_b32 s39, s2, 3"); e("s_and_b32 s39, s39, 3")
    e(f"s_mul_i32 {sRow}, s38, {192*512}"); e(f"s_mul_i32 s39, s39, {48*512}"); e(f"s_add_u32 {sRow}, {sRow}, s39")
    e(f"s_lshl_b32 {sKb}, s38, 19"); e("s_lshl_b32 s39, s3, 17"); e(f"s_add_u32 {sKb}, {sKb}, s39")
    e("s_lshr_b32 s39, s3, 1"); e("s_lshl_b32 s39, s39, 8")
    e(f"s_add_u32 {sVb[0]}, {sKb}, s39"); e(f"s_xor_b32 {sVb[1]}, {sVb[0]}, 256")
    e(f"s_mul_i32 {sLds}, s3, {WBYTES}")
    e(f"s_mov_b32 {sC}, {hex(f32bits(C_SCALE))}")
    e(f"s_and_b32 {sPar}, s3, 1"); e(f"s_lshl_b32 {sPar}, {sPar}, 7")
    a.c("K / Q DMA source offsets")
    e("v_lshrrev_b32 v30, 5, v0"); e("v_and_b32 v31, 31, v0"); e("v_lshlrev_b32 v32, 1, v30"); e("v_xor_b32 v31, v31, v32")
    e("v_lshlrev_b32 v31, 4, v31"); e(f"v_lshl_add_u32 v{vKd[0]}, v30, 9, v31")
    for n in range(1, 4): e(f"v_xor_b32 v{vKd[n]}, {64*n}, v{vKd[0]}")
    e(f"v_xor_b32 v33, {sPar}, v{vKd[0]}"); e(f"v_xor_b32 v34, {sPar}, v{vKd[1]}")
    e("s_waitcnt lgkmcnt(0)")
    e("s_mov_b32 s12, s4"); e("s_mov_b32 s13, s5"); e("s_mov_b32 s14, 6291456"); e("s_mov_b32 s15, 0x20000")
    e("s_mov_b32 s16, s6"); e("s_mov_b32 s17, s7"); e("s_mov_b32 s18, 0x2000000"); e("s_mov_b32 s19, 0x20000")
    e("s_lshl_b32 s39, s3, 11")
    e(f"s_add_u32 {sT}, {sRow}, s39")
    for m in range(3):
        e(f"s_add_u32 m0, s39, {m*WBYTES + 4*SLOT}")
        if m: e(f"s_add_u32 {sT}, {sT}, 8192")
        else: e("s_nop 0")
        a.vmem(f"buffer_load_dwordx4 v33, {sQ}, {sT} offen {qpol} lds", "Q")
        a.vmem(f"buffer_load_dwordx4 v34, {sQ}, {sT} offen offset:1024 {qpol} lds", "Q")

    order = [8, 9, 10, 11, 12, 13, 14, 15, 4, 5, 6, 7, 0, 1, 2, 3]
    def dma_list(u):
        out = []
        slot = (u % NSLOT) * SLOT
        for g in range(2):
            pre = [f"s_add_u32 m0, {sLds}, {slot + 4096*g}"]
            if u < 16:
                pre.append(f"s_add_u32 {sT}, {sKb}, {u*8192 + 4096*g}")
                srd, vo = sK, vKd
            else:
                kp, hf = (u - 16) >> 1, 1 - ((u - 16) & 1)
                pre.append(f"s_add_u32 {sT}, {sVb[hf]}, {kp*16384 + 8192*g}")
                srd, vo = sV, vVd
            for n in range(4):
                off = f" offset:{1024*n}" if n else ""
                out.append((u, pre if n == 0 else [], f"buffer_load_dwordx4 v{vo[n]}, {srd}, {sT} offen{off} {pol} lds"))
        return out
    def dma_emit(item):
        u, pre, ins = item
        for p in pre: e(p)
        a.vmem(ins, f"U{u}")
    for u in range(4):
        for it in dma_list(u): dma_emit(it)
    e("s_mov_b32 s20, s8"); e("s_mov_b32 s21, s9"); e("s_mov_b32 s22, 0x2000000"); e("s_mov_b32 s23, 0x20000")
    e("s_mov_b32 s24, s10"); e("s_mov_b32 s25, s11"); e("s_mov_b32 s26, 6291456"); e("s_mov_b32 s27, 0x20000")
    a.c("K fragment read addresses (v35..v42: the same pattern for the Q tiles)")
    e("v_and_b32 v30, 15, v0"); e("v_lshrrev_b32 v31, 4, v0"); e("v_and_b32 v32, 7, v0"); e("v_lshlrev_b32 v32, 1, v32")
    e("v_xor_b32 v32, v32, v31"); e("v_lshlrev_b32 v32, 4, v32"); e("v_lshl_add_u32 v35, v30, 9, v32")
    for s in range(1, 4): e(f"v_xor_b32 v{35+s}, {64*s}, v35")
    for s in range(4):
        e(f"v_add_u32 v{vKr[s]}, {sLds}, v{35+s}")
        e(f"v_add_u32 v{39+s}, {4*SLOT + 2*WBYTES}, v{35+s}")
        e(f"v_add_u32 v{35+s}, {4*SLOT}, v{35+s}")
    a.c("V DMA source offsets")
    e("v_lshlrev_b32 v32, 1, v31"); e("v_xor_b32 v32, v32, v30"); e("v_lshlrev_b32 v32, 4, v32")
    e(f"v_lshl_add_u32 v{vVd[0]}, v31, 9, v32")
    e(f"v_xor_b32 v{vVd[1]}, 128, v{vVd[0]}"); e(f"v_add_u32 v{vVd[2]}, 2048, v{vVd[0]}")
    e(f"v_add_u32 v{vVd[3]}, 3072, v{vVd[1]}"); e(f"v_add_u32 v{vVd[1]}, 1024, v{vVd[1]}")
    a.c("V transposed-read addresses")
    e("v_lshrrev_b32 v43, 2, v0"); e("v_and_b32 v32, 7, v43"); e("v_lshlrev_b32 v32, 5, v32"); e(f"v_xor_b32 v32, {sPar}, v32")
    e("v_and_b32 v44, 3, v0"); e("v_lshlrev_b32 v44, 3, v44"); e("v_lshl_add_u32 v44, v43, 8, v44"); e(f"v_add_u32 v44, {sLds}, v44")
    for j in range(8):
        e(f"v_xor_b32 v43, {32*j}, v32"); e(f"v_add_u32 v{vVr[j]}, v43, v44")
    for i in range(4): e(f"v_mov_b32 v{vOnes+i}, 0x3f803f80")
    a.wait(vm="Q")
    e("s_barrier")
    for m in range(3):
        for s in range(8):
            base = (35 if m < 2 else 39) + (s & 3)
            off = (WBYTES if m == 1 else 0) + 256 * (s >> 2)
            a.lds(f"ds_read_b128 {ar(Q(m, s))}, v{base} offset:{off}", "Qf")
    a.wait(lg="all")
    e("s_barrier")
    for it in dma_list(4): dma_emit(it)

    def reads(n):
        u, s = n >> 3, n & 7
        slot = (u % NSLOT) * SLOT
        if s == 0: a.wait(vm=f"U{u}")
        if u < 16:
            a.lds(f"ds_read_b128 {ar(F(n))}, v{vKr[s & 3]} offset:{slot + 256*(s >> 2)}", f"F{n}")
        else:
            j = order[8 * ((u - 16) & 1) + s]
            a.lds(f"ds_read_b64_tr_b16 {ar(F(n), 2)}, v{vVr[j & 7]} offset:{slot}", f"F{n}")
            a.lds(f"ds_read_b64_tr_b16 {ar(F(n)+2, 2)}, v{vVr[j & 7]} offset:{slot + 4096}", f"F{n}")
    def mfmas(n):
        u, s = n >> 3, n & 7
        out = []
        if u < 16:
            for m in range(3):
                d = vr(S(u, m))
                out.append(f"{MF} {d}, {ar(F(n))}, {ar(Q(m, s))}, {d if s else 0}")
        else:
            kp = (u - 16) >> 1
            j = order[8 * ((u - 16) & 1) + s]
            for m in range(3):
                d = ar(O(j, m))
                out.append(f"{MF} {d}, {ar(F(n))}, {vr(S(2*kp, m))}, {d if kp else 0}")
            if (u & 1) == 0 and s < 3:
                d = ar(Lr(s))
                out.append(f"{MF} {d}, {vr(vOnes)}, {vr(S(2*kp, s))}, {d if kp else 0}")
        return out
    def max_ops(kt):
        out = []
        for m in range(3):
            if kt == 0:
                out.append(f"v_max3_f32 v{vMx[m]}, v{S(0,m,0)}, v{S(0,m,1)}, v{S(0,m,2)}")
                out.append(f"v_max_f32_e64 v{vMx[m]}, v{vMx[m]}, v{S(0,m,3)}")
            else:
                out.append(f"v_max3_f32 v{vMx[m]}, v{vMx[m]}, v{S(kt,m,0)}, v{S(kt,m,1)}")
                out.append(f"v_max3_f32 v{vMx[m]}, v{vMx[m]}, v{S(kt,m,2)}, v{S(kt,m,3)}")
        return out
    def p_ops(kp):
        out = []
        for m in range(3):
            regs = [S(2*kp, m, r) for r in range(4)] + [S(2*kp+1, m, r) for r in range(4)]
            f = [f"v_fma_f32 v{x}, v{x}, {sC}, -v{vMx[m]}" for x in regs]
            x = [f"v_exp_f32_e64 v{x}, v{x}" for x in regs]
            c = [f"v_cvt_pk_bf16_f32 v{regs[i]}, v{regs[2*i]}, v{regs[2*i+1]}" for i in range(4)]
            out += [f[0], f[1], x[0], x[1], f[2], f[3], x[2], x[3], f[4], c[0], f[5], c[1], x[4], x[5], f[6], f[7], x[6], x[7], c[2]]
            out += [("late", c[3])]
        res = []
        pend = None
        for o in out:
            if isinstance(o, tuple):
                pend = o[1]; continue
            res.append(o)
            if pend: res.append(pend); pend = None
        res.append("s_nop 0"); res.append(pend)
        return res
    def blk(j, m): return 16384 + ((j - 8) * 3 + m) * 1024 if j >= 8 else ((j - 4) * 3 + m) * 1024
    vWr = 52
    for n in range(W): reads(n)
    pending_dma = []
    for n in range(256):
        u, s = n >> 3, n & 7
        if s == 0: a.c(f"unit {u}")
        fill = []
        if 1 <= u < 16 and s >= 2: fill.append(max_ops(u - 1)[s - 2])
        if u >= 16:
            kp, t = (u - 16) >> 1, n & 15
            if kp < 7:
                ops = p_ops(kp + 1)
                if t < 15: fill += ops[(len(ops) * t) // 15:(len(ops) * (t + 1)) // 15]
        wr = []
        if n == 240: fill.append(f"v_lshlrev_b32 v{vWr}, 4, v0"); fill.append(f"v_add_u32 v{vWr}, {sLds}, v{vWr}")
        if n >= 249:
            allw = [(j, m) for j in range(8, 16) for m in range(3)]
            t = n - 249
            wr = allw[(24 * t) // 7:(24 * (t + 1)) // 7]
        a.wait(lg=f"F{n}")
        if s == 7 and u + NSLOT < 32: pending_dma = dma_list(u + NSLOT)
        mf = mfmas(n)
        k = len(mf)
        for i, ins in enumerate(mf):
            e(ins)
            if i == 0 and pending_dma:
                cnt = len(pending_dma) if burst else 1
                for it in pending_dma[:cnt]: dma_emit(it)
                pending_dma = pending_dma[cnt:]
            for f in fill[(len(fill) * i) // k:(len(fill) * (i + 1)) // k]: e(f)
            for (j, m) in wr[(len(wr) * i) // k:(len(wr) * (i + 1)) // k]:
                a.lds(f"ds_write_b128 v{vWr}, {ar(O(j, m))} offset:{blk(j, m)}", "W")
        if n + W < 256: reads(n + W)
        if n == 127:
            a.c("row max across the wave's keys, scaled; first P tile")
            e("s_nop 7")
            for o in max_ops(15): e(o)
            for m in range(3): e(f"v_mov_b32 v{28+m}, v{vMx[m]}")
            e("s_nop 0")
            for m in range(3): e(f"v_permlane32_swap_b32 v{28+m}, v{vMx[m]}")
            for m in range(3): e(f"v_max_f32 v{vMx[m]}, v{vMx[m]}, v{28+m}")
            for m in range(3): e(f"v_mov_b32 v{28+m}, v{vMx[m]}")
            e("s_nop 0")
            for m in range(3): e(f"v_permlane16_swap_b32 v{28+m}, v{vMx[m]}")
            for m in range(3): e(f"v_max_f32 v{vMx[m]}, v{vMx[m]}, v{28+m}")
            for m in range(3): e(f"v_mul_f32 v{vMx[m]}, {sC}, v{vMx[m]}")
            for o in p_ops(0): e(o)
            e("s_nop 1")
    a.c("epilogue: publish partial sums for the other waves")
    def st(k, m): return 28 + 2 * (k * 3 + m)
    for j in range(4, 8):
        for m in range(3):
            a.lds(f"ds_write_b128 v{vWr}, {ar(O(j, m))} offset:{blk(j, m)}", "W")
    e("v_and_b32 v53, 15, v0"); e("v_lshlrev_b32 v53, 3, v53")
    for m in range(3):
        e(f"v_mov_b32 v{st(0,m)}, v{vMx[m]}"); e(f"v_accvgpr_read_b32 v{st(0,m)+1}, a{Lr(m)}")
    e(f"v_add_u32 v54, {sLds}, v53")
    for m in range(3):
        a.lds(f"ds_write_b64 v54, {vr(st(0,m), 2)} offset:{12288 + 128*m}", "W")
    for k in range(1, 4):
        e(f"s_xor_b32 s38, s3, {k}"); e(f"s_mul_i32 s38, s38, {WBYTES}")
        e(f"v_add_u32 v{54+k}, s38, v53")
        e(f"v_lshl_add_u32 v{57+k}, v0, 4, s38")
    OWN = 208
    for j in range(4):
        for m in range(3):
            for r in range(4): e(f"v_accvgpr_read_b32 v{OWN + (j*3+m)*4 + r}, a{O(j, m) + r}")
    a.wait(lg="all")
    e("s_barrier")
    for k in range(1, 4):
        for m in range(3):
            a.lds(f"ds_read_b64 {vr(st(k,m), 2)}, v{54+k} offset:{12288 + 128*m}", "St")
    def B(k, j, m): return 64 + (((k - 1) * 4 + j) * 3 + m) * 4
    rd = [(k, j, m) for m in range(3) for j in range(4) for k in range(1, 4)]
    def rd_emit(k, j, m):
        a.lds(f"ds_read_b128 {vr(B(k, j, m))}, v{57+k} offset:{blk(4*k + j, m)}", f"B{m}_{j}")
    for x in rd[:6]: rd_emit(*x)
    a.wait(lg="St")
    for x in rd[6:]: rd_emit(*x)
    for m in range(3):
        e(f"v_max3_f32 v{61}, v{st(0,m)}, v{st(1,m)}, v{st(2,m)}"); e(f"v_max_f32 v61, v61, v{st(3,m)}")
        for k in range(4): e(f"v_sub_f32 v{st(k,m)}, v{st(k,m)}, v61")
        for k in range(4): e(f"v_exp_f32 v{st(k,m)}, v{st(k,m)}")
        e("s_nop 0")
        e(f"v_mul_f32 v62, v{st(0,m)}, v{st(0,m)+1}")
        for k in range(1, 4): e(f"v_fmac_f32 v62, v{st(k,m)}, v{st(k,m)+1}")
        e("v_rcp_f32 v62, v62"); e("s_nop 0")
        for k in range(4): e(f"v_mul_f32 v{st(k,m)}, v{st(k,m)}, v62")
    e("v_and_b32 v53, 15, v0"); e("v_lshrrev_b32 v54, 4, v0"); e("v_lshlrev_b32 v54, 4, v54"); e("v_lshl_add_u32 v53, v53, 9, v54")
    e("s_lshl_b32 s38, s3, 7"); e(f"s_add_u32 {sT}, {sRow}, s38")
    for m in range(3):
        for j in range(4):
            a.wait(lg=f"B{m}_{j}")
            o = OWN + (j * 3 + m) * 4
            for h in (0, 2):
                e(f"v_pk_mul_f32 {vr(o+h, 2)}, {vr(o+h, 2)}, {vr(st(0,m), 2)} op_sel_hi:[1,0]")
            for k in range(1, 4):
                for h in (0, 2):
                    e(f"v_pk_fma_f32 {vr(o+h, 2)}, {vr(B(k,j,m)+h, 2)}, {vr(st(k,m), 2)}, {vr(o+h, 2)} op_sel_hi:[1,0,1]")
        X = 4 + 8 * m
        for p in range(2):
            for jj in range(2):
                o = OWN + ((2 * p + jj) * 3 + m) * 4
                e(f"v_cvt_pk_bf16_f32 v{X + 4*p + 2*jj}, v{o}, v{o+1}")
                e(f"v_cvt_pk_bf16_f32 v{X + 4*p + 2*jj + 1}, v{o+2}, v{o+3}")
        e("s_nop 1")
        for p in range(2):
            x = X + 4 * p
            e(f"v_permlane32_swap_b32 v{x}, v{x+2}"); e(f"v_permlane32_swap_b32 v{x+1}, v{x+3}")
        e("s_nop 1")
        for p in range(2):
            x = X + 4 * p
            e(f"v_permlane16_swap_b32 v{x}, v{x+2}"); e(f"v_permlane16_swap_b32 v{x+1}, v{x+3}")
        if m: e(f"s_add_u32 {sT}, {sT}, 8192")
        else: e("s_nop 0")
        for p in range(2):
            off = " offset:64" if p else ""
            a.vmem(f"buffer_store_dwordx4 {vr(X + 4*p)}, v53, {sO}, {sT} offen{off} {opol}", "out")
    if stamps:
        e("s_waitcnt vmcnt(0)")
        e("s_memrealtime s[42:43]")
        e("s_lshl_b32 s38, s2, 2"); e("s_add_u32 s38, s38, s3"); e("s_lshl_b32 s38, s38, 4")
        e("s_waitcnt lgkmcnt(0)")
        e("v_mov_b32 v4, s40"); e("v_mov_b32 v5, s41"); e("v_mov_b32 v6, s42"); e("v_mov_b32 v7, s43"); e("v_mov_b32 v8, s38")
        e("s_mov_b64 exec, 1")
        e("global_store_dwordx4 v8, v[4:7], s[44:45]")
    a.label("L_end")
    e("s_endpgm")
    return kernel_file(a.text(), notes=NOTES)

if __name__ == "__main__":
    src = gen()
    open("a_def.s", "w").write(src)
    open("a_nt.s", "w").write(gen(pol="nt"))
    print(build_co(gen(stamps=True), "a_def"))
    print(build_co(gen(stamps=True, pol="nt"), "a_nt"))
```

```python
import sys, struct
from asmlib import *

C_SCALE = 0.0625 * 1.4426950408889634
def f32bits(x): return struct.unpack("<I", struct.pack("<f", x))[0]

WBYTES = 40960
SLOT = 8192
NSLOT = 5

NOTES = """; GQA attention, two-phase per wave: S^T = K Q^T for the wave's 256 keys (registers), exact max,
"""

def gen(pol="", stamps=False, W=7, burst=True, opol="", qpol="", badmap=False, delay=0, prepass=None):
    a = Asm(); e = a.e
    vKd = [1, 2, 3, 4]; vKr = [5, 6, 7, 8]; vVd = [9, 10, 11, 12]; vVr = list(range(13, 21))
    vMx = [21, 22, 23]; vOnes = 24
    def S(kt, m, r=0): return 64 + (kt * 3 + m) * 4 + r
    def vr(b, n=4): return f"v[{b}:{b+n-1}]"
    def ar(b, n=4): return f"a[{b}:{b+n-1}]"
    def Q(m, s): return (m * 8 + s) * 4
    def O(j, m): return (j * 3 + m) * 4
    def Lr(m): return 192 + 4 * m
    def F(n): return 204 + 4 * (n % W)
    sQ, sK, sV, sO = "s[12:15]", "s[16:19]", "s[20:23]", "s[24:27]"
    sKb, sVb, sLds, sT, sC, sRow, sPar = "s28", ["s29", "s34"], "s30", "s31", "s32", "s33", "s35"
    MF = "v_mfma_f32_16x16x32_bf16"

    e("s_cmp_ge_u32 s2, 256"); e("s_cbranch_scc1 L_end")
    if stamps: e("s_memrealtime s[40:41]")
    e("s_load_dwordx4 s[4:7], s[0:1], 0"); e("s_load_dwordx4 s[8:11], s[0:1], 16")
    if stamps: e("s_load_dwordx2 s[44:45], s[0:1], 40")
    a.c("pull the kernel's code into L2")
    e("s_getpc_b64 s[36:37]")
    e("v_lshlrev_b32 v28, 7, v0")
    e("v_min_u32 v28, L_end - L_pc, v28")
    a.label("L_pc")
    a.vmem("global_load_dword v29, v28, s[36:37]", "code")
    e("v_lshrrev_b32 v30, 6, v0"); e("v_and_b32 v0, 63, v0")
    e("v_readfirstlane_b32 s3, v30")
    a.c("workgroup -> (kv group, 48-row quarter); ids equal mod 8 share K/V")
    if badmap:
        e("s_lshr_b32 s38, s2, 2"); e("s_and_b32 s39, s2, 3")
    else:
        e("s_and_b32 s38, s2, 7"); e("s_lshr_b32 s39, s2, 5"); e("s_lshl_b32 s39, s39, 3"); e("s_add_u32 s38, s38, s39")
        e("s_lshr_b32 s39, s2, 3"); e("s_and_b32 s39, s39, 3")
    e(f"s_mul_i32 {sRow}, s38, {192*512}"); e(f"s_mul_i32 s39, s39, {48*512}"); e(f"s_add_u32 {sRow}, {sRow}, s39")
    e(f"s_lshl_b32 {sKb}, s38, 19"); e("s_lshl_b32 s39, s3, 17"); e(f"s_add_u32 {sKb}, {sKb}, s39")
    e("s_lshr_b32 s39, s3, 1"); e("s_lshl_b32 s39, s39, 8")
    e(f"s_add_u32 {sVb[0]}, {sKb}, s39"); e(f"s_xor_b32 {sVb[1]}, {sVb[0]}, 256")
    e(f"s_mul_i32 {sLds}, s3, {WBYTES}")
    e(f"s_mov_b32 {sC}, {hex(f32bits(C_SCALE))}")
    e(f"s_and_b32 {sPar}, s3, 1"); e(f"s_lshl_b32 {sPar}, {sPar}, 7")
    a.c("K / Q DMA source offsets")
    e("v_lshrrev_b32 v30, 5, v0"); e("v_and_b32 v31, 31, v0"); e("v_lshlrev_b32 v32, 1, v30"); e("v_xor_b32 v31, v31, v32")
    e("v_lshlrev_b32 v31, 4, v31"); e(f"v_lshl_add_u32 v{vKd[0]}, v30, 9, v31")
    for n in range(1, 4): e(f"v_xor_b32 v{vKd[n]}, {64*n}, v{vKd[0]}")
    e(f"v_xor_b32 v33, {sPar}, v{vKd[0]}"); e(f"v_xor_b32 v34, {sPar}, v{vKd[1]}")
    e("s_waitcnt lgkmcnt(0)")
    e("s_mov_b32 s12, s4"); e("s_mov_b32 s13, s5"); e("s_mov_b32 s14, 6291456"); e("s_mov_b32 s15, 0x20000")
    e("s_mov_b32 s16, s6"); e("s_mov_b32 s17, s7"); e("s_mov_b32 s18, 0x2000000"); e("s_mov_b32 s19, 0x20000")
    if delay:
        e(f"s_mov_b32 s38, {delay}")
        a.label("L_delay")
        for i in range(16): e(f"v_fma_f32 v{40+i}, v30, v30, v30")
        e("s_sub_u32 s38, s38, 1"); e("s_cmp_lg_u32 s38, 0"); e("s_cbranch_scc1 L_delay")
    if prepass is not None:
        e("s_mov_b32 s20, s8"); e("s_mov_b32 s21, s9"); e("s_mov_b32 s22, 0x2000000"); e("s_mov_b32 s23, 0x20000")
        e("s_lshr_b32 s39, s2, 3"); e("s_and_b32 s39, s39, 3"); e("s_lshl_b32 s39, s39, 15"); e(f"s_add_u32 s39, s39, {sKb}")
        e("v_lshlrev_b32 v40, 4, v0")
        for i in range(64):
            e(f"s_add_u32 m0, {sLds}, {(i % 32) * 1024}"); e(f"s_add_u32 {sT}, s39, {(i % 32) * 1024}")
            e(f"buffer_load_dwordx4 v40, {sK if i < 32 else sV}, {sT} offen {prepass} lds")
            if i >= 31: e("s_waitcnt vmcnt(31)")
        e("s_waitcnt vmcnt(0)")
    e("s_lshl_b32 s39, s3, 11")
    e(f"s_add_u32 {sT}, {sRow}, s39")
    for m in range(3):
        e(f"s_add_u32 m0, s39, {m*WBYTES + 4*SLOT}")
        if m: e(f"s_add_u32 {sT}, {sT}, 8192")
        else: e("s_nop 0")
        a.vmem(f"buffer_load_dwordx4 v33, {sQ}, {sT} offen {qpol} lds", "Q")
        a.vmem(f"buffer_load_dwordx4 v34, {sQ}, {sT} offen offset:1024 {qpol} lds", "Q")

    order = [8, 9, 10, 11, 12, 13, 14, 15, 4, 5, 6, 7, 0, 1, 2, 3]
    def dma_list(u):
        out = []
        slot = (u % NSLOT) * SLOT
        for g in range(2):
            pre = [f"s_add_u32 m0, {sLds}, {slot + 4096*g}"]
            if u < 16:
                pre.append(f"s_add_u32 {sT}, {sKb}, {u*8192 + 4096*g}")
                srd, vo = sK, vKd
            else:
                kp, hf = (u - 16) >> 1, 1 - ((u - 16) & 1)
                pre.append(f"s_add_u32 {sT}, {sVb[hf]}, {kp*16384 + 8192*g}")
                srd, vo = sV, vVd
            for n in range(4):
                off = f" offset:{1024*n}" if n else ""
                out.append((u, pre if n == 0 else [], f"buffer_load_dwordx4 v{vo[n]}, {srd}, {sT} offen{off} {pol} lds"))
        return out
    def dma_emit(item):
        u, pre, ins = item
        for p in pre: e(p)
        a.vmem(ins, f"U{u}")
    for u in range(4):
        for it in dma_list(u): dma_emit(it)
    e("s_mov_b32 s20, s8"); e("s_mov_b32 s21, s9"); e("s_mov_b32 s22, 0x2000000"); e("s_mov_b32 s23, 0x20000")
    e("s_mov_b32 s24, s10"); e("s_mov_b32 s25, s11"); e("s_mov_b32 s26, 6291456"); e("s_mov_b32 s27, 0x20000")
    a.c("K fragment read addresses (v35..v42: the same pattern for the Q tiles)")
    e("v_and_b32 v30, 15, v0"); e("v_lshrrev_b32 v31, 4, v0"); e("v_and_b32 v32, 7, v0"); e("v_lshlrev_b32 v32, 1, v32")
    e("v_xor_b32 v32, v32, v31"); e("v_lshlrev_b32 v32, 4, v32"); e("v_lshl_add_u32 v35, v30, 9, v32")
    for s in range(1, 4): e(f"v_xor_b32 v{35+s}, {64*s}, v35")
    for s in range(4):
        e(f"v_add_u32 v{vKr[s]}, {sLds}, v{35+s}")
        e(f"v_add_u32 v{39+s}, {4*SLOT + 2*WBYTES}, v{35+s}")
        e(f"v_add_u32 v{35+s}, {4*SLOT}, v{35+s}")
    a.c("V DMA source offsets")
    e("v_lshlrev_b32 v32, 1, v31"); e("v_xor_b32 v32, v32, v30"); e("v_lshlrev_b32 v32, 4, v32")
    e(f"v_lshl_add_u32 v{vVd[0]}, v31, 9, v32")
    e(f"v_xor_b32 v{vVd[1]}, 128, v{vVd[0]}"); e(f"v_add_u32 v{vVd[2]}, 2048, v{vVd[0]}")
    e(f"v_add_u32 v{vVd[3]}, 3072, v{vVd[1]}"); e(f"v_add_u32 v{vVd[1]}, 1024, v{vVd[1]}")
    a.c("V transposed-read addresses")
    e("v_lshrrev_b32 v43, 2, v0"); e("v_and_b32 v32, 7, v43"); e("v_lshlrev_b32 v32, 5, v32"); e(f"v_xor_b32 v32, {sPar}, v32")
    e("v_and_b32 v44, 3, v0"); e("v_lshlrev_b32 v44, 3, v44"); e("v_lshl_add_u32 v44, v43, 8, v44"); e(f"v_add_u32 v44, {sLds}, v44")
    for j in range(8):
        e(f"v_xor_b32 v43, {32*j}, v32"); e(f"v_add_u32 v{vVr[j]}, v43, v44")
    for i in range(4): e(f"v_mov_b32 v{vOnes+i}, 0x3f803f80")
    a.wait(vm="Q")
    e("s_barrier")
    for m in range(3):
        for s in range(8):
            base = (35 if m < 2 else 39) + (s & 3)
            off = (WBYTES if m == 1 else 0) + 256 * (s >> 2)
            a.lds(f"ds_read_b128 {ar(Q(m, s))}, v{base} offset:{off}", "Qf")
    a.wait(lg="all")
    e("s_barrier")
    for it in dma_list(4): dma_emit(it)

    def reads(n):
        u, s = n >> 3, n & 7
        slot = (u % NSLOT) * SLOT
        if s == 0: a.wait(vm=f"U{u}")
        if u < 16:
            a.lds(f"ds_read_b128 {ar(F(n))}, v{vKr[s & 3]} offset:{slot + 256*(s >> 2)}", f"F{n}")
        else:
            j = order[8 * ((u - 16) & 1) + s]
            a.lds(f"ds_read_b64_tr_b16 {ar(F(n), 2)}, v{vVr[j & 7]} offset:{slot}", f"F{n}")
            a.lds(f"ds_read_b64_tr_b16 {ar(F(n)+2, 2)}, v{vVr[j & 7]} offset:{slot + 4096}", f"F{n}")
    def mfmas(n):
        u, s = n >> 3, n & 7
        out = []
        if u < 16:
            for m in range(3):
                d = vr(S(u, m))
                out.append(f"{MF} {d}, {ar(F(n))}, {ar(Q(m, s))}, {d if s else 0}")
        else:
            kp = (u - 16) >> 1
            j = order[8 * ((u - 16) & 1) + s]
            for m in range(3):
                d = ar(O(j, m))
                out.append(f"{MF} {d}, {ar(F(n))}, {vr(S(2*kp, m))}, {d if kp else 0}")
            if (u & 1) == 0 and s < 3:
                d = ar(Lr(s))
                out.append(f"{MF} {d}, {vr(vOnes)}, {vr(S(2*kp, s))}, {d if kp else 0}")
        return out
    def max_ops(kt):
        out = []
        for m in range(3):
            if kt == 0:
                out.append(f"v_max3_f32 v{vMx[m]}, v{S(0,m,0)}, v{S(0,m,1)}, v{S(0,m,2)}")
                out.append(f"v_max_f32_e64 v{vMx[m]}, v{vMx[m]}, v{S(0,m,3)}")
            else:
                out.append(f"v_max3_f32 v{vMx[m]}, v{vMx[m]}, v{S(kt,m,0)}, v{S(kt,m,1)}")
                out.append(f"v_max3_f32 v{vMx[m]}, v{vMx[m]}, v{S(kt,m,2)}, v{S(kt,m,3)}")
        return out
    def p_ops(kp):
        out = []
        for m in range(3):
            regs = [S(2*kp, m, r) for r in range(4)] + [S(2*kp+1, m, r) for r in range(4)]
            f = [f"v_fma_f32 v{x}, v{x}, {sC}, -v{vMx[m]}" for x in regs]
            x = [f"v_exp_f32_e64 v{x}, v{x}" for x in regs]
            c = [f"v_cvt_pk_bf16_f32 v{regs[i]}, v{regs[2*i]}, v{regs[2*i+1]}" for i in range(4)]
            out += [f[0], f[1], x[0], x[1], f[2], f[3], x[2], x[3], f[4], c[0], f[5], c[1], x[4], x[5], f[6], f[7], x[6], x[7], c[2]]
            out += [("late", c[3])]
        res = []
        pend = None
        for o in out:
            if isinstance(o, tuple):
                pend = o[1]; continue
            res.append(o)
            if pend: res.append(pend); pend = None
        res.append("s_nop 0"); res.append(pend)
        return res
    def blk(j, m): return 16384 + ((j - 8) * 3 + m) * 1024 if j >= 8 else ((j - 4) * 3 + m) * 1024
    vWr = 52
    for n in range(W): reads(n)
    pending_dma = []
    for n in range(256):
        u, s = n >> 3, n & 7
        if s == 0: a.c(f"unit {u}")
        fill = []
        if 1 <= u < 16 and s >= 2: fill.append(max_ops(u - 1)[s - 2])
        if u >= 16:
            kp, t = (u - 16) >> 1, n & 15
            if kp < 7:
                ops = p_ops(kp + 1)
                if t < 15: fill += ops[(len(ops) * t) // 15:(len(ops) * (t + 1)) // 15]
        wr = []
        if n == 240: fill.append(f"v_lshlrev_b32 v{vWr}, 4, v0"); fill.append(f"v_add_u32 v{vWr}, {sLds}, v{vWr}")
        if n >= 249:
            allw = [(j, m) for j in range(8, 16) for m in range(3)]
            t = n - 249
            wr = allw[(24 * t) // 7:(24 * (t + 1)) // 7]
        a.wait(lg=f"F{n}")
        if s == 7 and u + NSLOT < 32: pending_dma = dma_list(u + NSLOT)
        mf = mfmas(n)
        k = len(mf)
        for i, ins in enumerate(mf):
            e(ins)
            if i == 0 and pending_dma:
                cnt = len(pending_dma) if burst else 1
                for it in pending_dma[:cnt]: dma_emit(it)
                pending_dma = pending_dma[cnt:]
            for f in fill[(len(fill) * i) // k:(len(fill) * (i + 1)) // k]: e(f)
            for (j, m) in wr[(len(wr) * i) // k:(len(wr) * (i + 1)) // k]:
                a.lds(f"ds_write_b128 v{vWr}, {ar(O(j, m))} offset:{blk(j, m)}", "W")
        if n + W < 256: reads(n + W)
        if n == 127:
            a.c("row max across the wave's keys, scaled; first P tile")
            e("s_nop 7")
            for o in max_ops(15): e(o)
            for m in range(3): e(f"v_mov_b32 v{28+m}, v{vMx[m]}")
            e("s_nop 0")
            for m in range(3): e(f"v_permlane32_swap_b32 v{28+m}, v{vMx[m]}")
            for m in range(3): e(f"v_max_f32 v{vMx[m]}, v{vMx[m]}, v{28+m}")
            for m in range(3): e(f"v_mov_b32 v{28+m}, v{vMx[m]}")
            e("s_nop 0")
            for m in range(3): e(f"v_permlane16_swap_b32 v{28+m}, v{vMx[m]}")
            for m in range(3): e(f"v_max_f32 v{vMx[m]}, v{vMx[m]}, v{28+m}")
            for m in range(3): e(f"v_mul_f32 v{vMx[m]}, {sC}, v{vMx[m]}")
            for o in p_ops(0): e(o)
            e("s_nop 1")
    a.c("epilogue: publish partial sums for the other waves")
    def st(k, m): return 28 + 2 * (k * 3 + m)
    for j in range(4, 8):
        for m in range(3):
            a.lds(f"ds_write_b128 v{vWr}, {ar(O(j, m))} offset:{blk(j, m)}", "W")
    e("v_and_b32 v53, 15, v0"); e("v_lshlrev_b32 v53, 3, v53")
    for m in range(3):
        e(f"v_mov_b32 v{st(0,m)}, v{vMx[m]}"); e(f"v_accvgpr_read_b32 v{st(0,m)+1}, a{Lr(m)}")
    e(f"v_add_u32 v54, {sLds}, v53")
    for m in range(3):
        a.lds(f"ds_write_b64 v54, {vr(st(0,m), 2)} offset:{12288 + 128*m}", "W")
    for k in range(1, 4):
        e(f"s_xor_b32 s38, s3, {k}"); e(f"s_mul_i32 s38, s38, {WBYTES}")
        e(f"v_add_u32 v{54+k}, s38, v53")
        e(f"v_lshl_add_u32 v{57+k}, v0, 4, s38")
    OWN = 208
    for j in range(4):
        for m in range(3):
            for r in range(4): e(f"v_accvgpr_read_b32 v{OWN + (j*3+m)*4 + r}, a{O(j, m) + r}")
    a.wait(lg="all")
    e("s_barrier")
    for k in range(1, 4):
        for m in range(3):
            a.lds(f"ds_read_b64 {vr(st(k,m), 2)}, v{54+k} offset:{12288 + 128*m}", "St")
    def B(k, j, m): return 64 + (((k - 1) * 4 + j) * 3 + m) * 4
    rd = [(k, j, m) for m in range(3) for j in range(4) for k in range(1, 4)]
    def rd_emit(k, j, m):
        a.lds(f"ds_read_b128 {vr(B(k, j, m))}, v{57+k} offset:{blk(4*k + j, m)}", f"B{m}_{j}")
    for x in rd[:6]: rd_emit(*x)
    a.wait(lg="St")
    for x in rd[6:]: rd_emit(*x)
    for m in range(3):
        e(f"v_max3_f32 v{61}, v{st(0,m)}, v{st(1,m)}, v{st(2,m)}"); e(f"v_max_f32 v61, v61, v{st(3,m)}")
        for k in range(4): e(f"v_sub_f32 v{st(k,m)}, v{st(k,m)}, v61")
        for k in range(4): e(f"v_exp_f32 v{st(k,m)}, v{st(k,m)}")
        e("s_nop 0")
        e(f"v_mul_f32 v62, v{st(0,m)}, v{st(0,m)+1}")
        for k in range(1, 4): e(f"v_fmac_f32 v62, v{st(k,m)}, v{st(k,m)+1}")
        e("v_rcp_f32 v62, v62"); e("s_nop 0")
        for k in range(4): e(f"v_mul_f32 v{st(k,m)}, v{st(k,m)}, v62")
    e("v_and_b32 v53, 15, v0"); e("v_lshrrev_b32 v54, 4, v0"); e("v_lshlrev_b32 v54, 4, v54"); e("v_lshl_add_u32 v53, v53, 9, v54")
    e("s_lshl_b32 s38, s3, 7"); e(f"s_add_u32 {sT}, {sRow}, s38")
    for m in range(3):
        for j in range(4):
            a.wait(lg=f"B{m}_{j}")
            o = OWN + (j * 3 + m) * 4
            for h in (0, 2):
                e(f"v_pk_mul_f32 {vr(o+h, 2)}, {vr(o+h, 2)}, {vr(st(0,m), 2)} op_sel_hi:[1,0]")
            for k in range(1, 4):
                for h in (0, 2):
                    e(f"v_pk_fma_f32 {vr(o+h, 2)}, {vr(B(k,j,m)+h, 2)}, {vr(st(k,m), 2)}, {vr(o+h, 2)} op_sel_hi:[1,0,1]")
        X = 4 + 8 * m
        for p in range(2):
            for jj in range(2):
                o = OWN + ((2 * p + jj) * 3 + m) * 4
                e(f"v_cvt_pk_bf16_f32 v{X + 4*p + 2*jj}, v{o}, v{o+1}")
                e(f"v_cvt_pk_bf16_f32 v{X + 4*p + 2*jj + 1}, v{o+2}, v{o+3}")
        e("s_nop 1")
        for p in range(2):
            x = X + 4 * p
            e(f"v_permlane32_swap_b32 v{x}, v{x+2}"); e(f"v_permlane32_swap_b32 v{x+1}, v{x+3}")
        e("s_nop 1")
        for p in range(2):
            x = X + 4 * p
            e(f"v_permlane16_swap_b32 v{x}, v{x+2}"); e(f"v_permlane16_swap_b32 v{x+1}, v{x+3}")
        if m: e(f"s_add_u32 {sT}, {sT}, 8192")
        else: e("s_nop 0")
        for p in range(2):
            off = " offset:64" if p else ""
            a.vmem(f"buffer_store_dwordx4 {vr(X + 4*p)}, v53, {sO}, {sT} offen{off} {opol}", "out")
    if stamps:
        e("s_waitcnt vmcnt(0)")
        e("s_memrealtime s[42:43]")
        e("s_lshl_b32 s38, s2, 2"); e("s_add_u32 s38, s38, s3"); e("s_lshl_b32 s38, s38, 4")
        e("s_waitcnt lgkmcnt(0)")
        e("v_mov_b32 v4, s40"); e("v_mov_b32 v5, s41"); e("v_mov_b32 v6, s42"); e("v_mov_b32 v7, s43"); e("v_mov_b32 v8, s38")
        e("s_mov_b64 exec, 1")
        e("global_store_dwordx4 v8, v[4:7], s[44:45]")
    a.label("L_end")
    e("s_endpgm")
    return kernel_file(a.text(), notes=NOTES)

if __name__ == "__main__":
    variants = {"a_def": {}, "a_delay": dict(delay=400), "a_pre_def": dict(prepass=""), "a_pre_nt": dict(prepass="nt"),
                "a_nt_delay": dict(pol="nt", delay=400), "a_nt": dict(pol="nt")}
    for n, kw in variants.items():
        open(f"cdna_kernels/{n}.s", "w").write(gen(**kw))
        print(build_co(gen(stamps=True, **kw), f"bench/{n}"))
```

```python
import sys, struct
from asmlib import *

C_SCALE = 0.0625 * 1.4426950408889634
def f32bits(x): return struct.unpack("<I", struct.pack("<f", x))[0]

RING = 81920
SLOT = 16384
NSLOT = 5
QOFF = 57344
LAST = 255

NOTES = """; GQA attention. Workgroup = 96 query rows (one q head) x 512 keys, wave = 48 rows x 256 keys.
"""

def gen(pol="nt", qpol="", opol="", W=7, burst=False, stamps=False, tl=False, spin=0, xst="sc1", xld="sc1", pretouch=True):
    a = Asm(); e = a.e
    vKd = [1, 2, 3, 4]; vKr = [5, 6, 7, 8]; vVr = list(range(9, 17))
    vMx = [17, 18, 19]; vOnes = 20; vNon = 24; vDum = 25; vZero = 26; vLane16 = 27
    def S(kt, m, r=0): return 64 + (kt * 3 + m) * 4 + r
    def vr(b, n=4): return f"v[{b}:{b+n-1}]"
    def ar(b, n=4): return f"a[{b}:{b+n-1}]"
    def Q(m, s): return (m * 8 + s) * 4
    def O(j, m): return (j * 3 + m) * 4
    def Lr(m): return 192 + 4 * m
    def F(n): return 204 + 4 * (n % W)
    sQ, sK, sV, sO, sW = "s[12:15]", "s[16:19]", "s[20:23]", "s[24:27]", "s[48:51]"
    sKb, sDst, sRing, sT, sC, sRow, sOwn = "s28", "s29", "s30", "s31", "s32", "s33", "s34"
    sMh, sKq, sGrp, sMem, sIn, sPin, sSib = "s35", "s46", "s47", "s52", "s53", "s54", "s55"
    sDbg = "s[56:57]"
    MF = "v_mfma_f32_16x16x32_bf16"
    tls = []
    def stamp(drain=True):
        if tl:
            k = len(tls); tls.append(k)
            if drain: e("s_waitcnt lgkmcnt(0)")
            e(f"s_memrealtime s[{64+2*k}:{65+2*k}]")
            e("s_waitcnt lgkmcnt(0)")

    e("s_cmp_ge_u32 s2, 256"); e("s_cbranch_scc1 L_end")
    e("s_memrealtime s[40:41]")
    e("s_load_dwordx4 s[4:7], s[0:1], 0"); e("s_load_dwordx4 s[8:11], s[0:1], 16"); e("s_load_dwordx4 s[56:59], s[0:1], 32")
    a.c("pull the kernel's code into L2")
    e("s_getpc_b64 s[36:37]")
    e("v_lshlrev_b32 v28, 7, v0")
    e("v_min_u32 v28, L_end - L_pc, v28")
    a.label("L_pc")
    a.vmem(f"global_load_dword v{vDum}, v28, s[36:37]", "code")
    e("v_lshrrev_b32 v30, 6, v0"); e("v_and_b32 v0, 63, v0")
    e("v_readfirstlane_b32 s3, v30")
    a.c("workgroup -> (kv group, q head of the group, key half); ids equal mod 8 work on one group")
    e(f"s_and_b32 {sGrp}, s2, 7"); e("s_lshr_b32 s39, s2, 5"); e("s_lshl_b32 s39, s39, 3"); e(f"s_add_u32 {sGrp}, {sGrp}, s39")
    e(f"s_bfe_u32 {sMem}, s2, 0x20003")
    e(f"s_and_b32 s39, {sMem}, 1"); e(f"s_lshl_b32 s38, {sGrp}, 1"); e("s_add_u32 s38, s38, s39"); e(f"s_mul_i32 {sRow}, s38, {96*512}")
    e(f"s_lshr_b32 s39, {sMem}, 1"); e(f"s_lshl_b32 {sKb}, {sGrp}, 19"); e("s_lshl_b32 s38, s39, 18"); e(f"s_add_u32 {sKb}, {sKb}, s38")
    e("s_lshl_b32 s38, s3, 13"); e(f"s_add_u32 {sKb}, {sKb}, s38")
    e(f"s_and_b32 {sMh}, s3, 1"); e(f"s_lshr_b32 {sKq}, s3, 1")
    e(f"s_lshl_b32 {sOwn}, s39, 1"); e(f"s_add_u32 {sOwn}, {sOwn}, {sKq}"); e(f"s_lshl_b32 {sOwn}, {sOwn}, 7")
    e(f"s_mul_i32 {sRing}, {sKq}, {RING}"); e(f"s_lshl_b32 s38, {sMh}, 13"); e(f"s_add_u32 {sDst}, {sRing}, s38")
    a.c("K / V / Q DMA source offsets")
    e("v_lshrrev_b32 v30, 5, v0"); e("v_and_b32 v31, 31, v0"); e("v_lshlrev_b32 v32, 1, v30"); e("v_xor_b32 v31, v31, v32")
    e("v_lshlrev_b32 v31, 4, v31"); e(f"v_lshl_add_u32 v{vKd[0]}, v30, 9, v31")
    for n in range(1, 4): e(f"v_xor_b32 v{vKd[n]}, {64*n}, v{vKd[0]}")
    e(f"s_lshl_b32 s38, {sMh}, 7")
    e(f"v_xor_b32 v33, s38, v{vKd[0]}"); e(f"v_xor_b32 v34, s38, v{vKd[1]}")
    e("s_lshl_b32 s39, s3, 11")
    e(f"s_add_u32 {sT}, {sRow}, s39")
    e("s_waitcnt lgkmcnt(0)")
    if tl:
        tls.append(0); e("s_mov_b32 s64, s40")
    e("s_mov_b32 s12, s4"); e("s_mov_b32 s13, s5"); e("s_mov_b32 s14, 6291456"); e("s_mov_b32 s15, 0x20000")
    e("s_mov_b32 s16, s6"); e("s_mov_b32 s17, s7"); e("s_mov_b32 s18, 0x2000000"); e("s_mov_b32 s19, 0x20000")
    for t in range(6):
        e(f"s_add_u32 m0, s39, {(t // 3)*RING + QOFF + (t % 3)*8192}")
        if t: e(f"s_add_u32 {sT}, {sT}, 8192")
        else: e("s_nop 0")
        a.vmem(f"buffer_load_dwordx4 v33, {sQ}, {sT} offen {qpol} lds", "Q")
        a.vmem(f"buffer_load_dwordx4 v34, {sQ}, {sT} offen offset:1024 {qpol} lds", "Q")

    order = [12, 13, 14, 15, 8, 9, 10, 11, 4, 5, 6, 7, 0, 1, 2, 3]
    def dma_list(u):
        out = []
        slot = (u % NSLOT) * SLOT
        srd = sK if u < 8 else sV
        for g in range(2):
            pre = []
            if u == 8 and g == 0:
                pre += [f"v_xor_b32 v{vKd[n]}, {sOwn}, v{vKd[n]}" for n in range(4)]
            pre += [f"s_add_u32 m0, {sDst}, {slot + 4096*g}", f"s_add_u32 {sT}, {sKb}, {(u & 7)*32768 + 4096*g}"]
            for n in range(4):
                off = f" offset:{1024*n}" if n else ""
                out.append((u, pre if n == 0 else [], f"buffer_load_dwordx4 v{vKd[n]}, {srd}, {sT} offen{off} {pol} lds"))
        return out
    def dma_emit(item):
        u, pre, ins = item
        for p in pre: e(p)
        a.vmem(ins, f"U{u}")
    for u in range(2):
        for it in dma_list(u): dma_emit(it)
    e("s_mov_b32 s20, s8"); e("s_mov_b32 s21, s9"); e("s_mov_b32 s22, 0x2000000"); e("s_mov_b32 s23, 0x20000")
    e("s_mov_b32 s24, s10"); e("s_mov_b32 s25, s11"); e("s_mov_b32 s26, 6291456"); e("s_mov_b32 s27, 0x20000")
    e("s_mov_b32 s48, s58"); e("s_mov_b32 s49, s59"); e("s_mov_b32 s50, 0x800000"); e("s_mov_b32 s51, 0x20000")
    e(f"s_mov_b32 {sC}, {hex(f32bits(C_SCALE))}")
    e("s_lshl_b32 s38, s2, 2"); e("s_add_u32 s38, s38, s3"); e(f"s_lshl_b32 {sIn}, s38, 13"); e(f"s_xor_b32 {sPin}, {sIn}, {64 << 13}")
    e(f"s_xor_b32 s38, {sKq}, 1"); e(f"s_mul_i32 {sSib}, s38, {RING}"); e(f"s_lshl_b32 s38, {sMh}, 14"); e(f"s_add_u32 {sSib}, {sSib}, s38")
    a.c("the group's first workgroup publishes the launch nonce")
    e(f"s_lshl_b32 s38, {sGrp}, 2"); e(f"v_mov_b32 v{vZero}, 0"); e("v_mov_b32 v45, s38")
    e(f"s_or_b32 s38, {sMem}, s3"); e("s_cmp_eq_u32 s38, 0"); e("s_cbranch_scc0 L_nopub")
    e("s_or_b32 s38, s40, 1"); e("v_mov_b32 v46, s38")
    e(f"global_store_dword v45, v46, {sDbg} sc1")
    a.label("L_nopub")
    a.c("K fragment read addresses (v35..v38: the same pattern for the Q tiles)")
    e("v_and_b32 v30, 15, v0"); e("v_lshrrev_b32 v31, 4, v0"); e("v_and_b32 v32, 7, v0"); e("v_lshlrev_b32 v32, 1, v32")
    e("v_xor_b32 v32, v32, v31"); e("v_lshlrev_b32 v32, 4, v32"); e("v_lshl_add_u32 v35, v30, 9, v32")
    for s in range(1, 4): e(f"v_xor_b32 v{35+s}, {64*s}, v35")
    e(f"s_mul_i32 s38, {sMh}, {RING}"); e(f"s_add_u32 s38, s38, {QOFF}")
    for s in range(4):
        e(f"v_add_u32 v{vKr[s]}, {sRing}, v{35+s}")
        e(f"v_add_u32 v{35+s}, s38, v{35+s}")
    a.c("V transposed-read addresses")
    e("v_lshrrev_b32 v43, 2, v0"); e("v_and_b32 v32, 7, v43"); e("v_lshlrev_b32 v32, 5, v32")
    e("v_and_b32 v44, 3, v0"); e("v_lshlrev_b32 v44, 3, v44"); e("v_lshl_add_u32 v44, v43, 9, v44"); e(f"s_add_u32 s38, {sRing}, 0x8000"); e("v_add_u32 v44, s38, v44")
    for j in range(8):
        e(f"v_xor_b32 v43, {32*j}, v32"); e(f"v_add_u32 v{vVr[j]}, v43, v44")
    for i in range(4): e(f"v_mov_b32 v{vOnes+i}, 0x3f803f80")
    e(f"v_lshlrev_b32 v{vLane16}, 4, v0")
    stamp()
    e("s_waitcnt vmcnt(16)")
    stamp()
    e("s_barrier")
    for m in range(3):
        for s in range(8):
            a.lds(f"ds_read_b128 {ar(Q(m, s))}, v{35 + (s & 3)} offset:{m*8192 + 256*(s >> 2)}", "Qf")
    for it in dma_list(2): dma_emit(it)
    a.wait(lg="all")

    pending = []
    bias = {r: 0 for r in vKr}; bias.update({r: 32768 for r in vVr})
    def lofs(reg, lo, hi):
        if hi - bias[reg] > 65535:
            e(f"v_add_u32 v{reg}, 0x8000, v{reg}"); bias[reg] = 32768
        elif lo < bias[reg]:
            e(f"v_subrev_u32 v{reg}, 0x8000, v{reg}"); bias[reg] = 0
        return lo - bias[reg]
    def reads(n):
        u, s = n >> 4, n & 15
        slot = (u % NSLOT) * SLOT
        if s == 0:
            a.wait(vm=f"U{u}")
            e("s_barrier")
            if u + 3 < 16: pending.extend(dma_list(u + 3))
            if burst or n == 0:
                while pending: dma_emit(pending.pop(0))
        if u < 8:
            o = slot + 8192 * (s >> 3) + 256 * ((s >> 2) & 1)
            a.lds(f"ds_read_b128 {ar(F(n))}, v{vKr[s & 3]} offset:{lofs(vKr[s & 3], o, o)}", f"F{n}")
        else:
            j = order[s]
            o = lofs(vVr[j & 7], slot + 256 * (j >> 3), slot + 256 * (j >> 3) + 8192)
            a.lds(f"ds_read_b64_tr_b16 {ar(F(n), 2)}, v{vVr[j & 7]} offset:{o}", f"F{n}")
            a.lds(f"ds_read_b64_tr_b16 {ar(F(n)+2, 2)}, v{vVr[j & 7]} offset:{o + 8192}", f"F{n}")
    def mfmas(n):
        u, s = n >> 4, n & 15
        out = []
        if u < 8:
            kt, ss = n >> 3, n & 7
            for m in range(3):
                d = vr(S(kt, m))
                out.append(f"{MF} {d}, {ar(F(n))}, {ar(Q(m, ss))}, {d if ss else 0}")
        else:
            kp = u - 8
            j = order[s]
            for m in range(3):
                d = ar(O(j, m))
                out.append(f"{MF} {d}, {ar(F(n))}, {vr(S(2*kp, m))}, {d if kp else 0}")
            if s < 3:
                d = ar(Lr(s))
                out.append(f"{MF} {d}, {vr(vOnes)}, {vr(S(2*kp, s))}, {d if kp else 0}")
        return out
    def max_ops(kt):
        out = []
        for m in range(3):
            if kt == 0:
                out.append(f"v_max3_f32 v{vMx[m]}, v{S(0,m,0)}, v{S(0,m,1)}, v{S(0,m,2)}")
                out.append(f"v_max_f32_e64 v{vMx[m]}, v{vMx[m]}, v{S(0,m,3)}")
            else:
                out.append(f"v_max3_f32 v{vMx[m]}, v{vMx[m]}, v{S(kt,m,0)}, v{S(kt,m,1)}")
                out.append(f"v_max3_f32 v{vMx[m]}, v{vMx[m]}, v{S(kt,m,2)}, v{S(kt,m,3)}")
        return out
    def p_ops(kp):
        res = []
        for m in range(3):
            regs = [S(2*kp, m, r) for r in range(4)] + [S(2*kp+1, m, r) for r in range(4)]
            f = [f"v_fma_f32 v{x}, v{x}, {sC}, -v{vMx[m]}" for x in regs]
            x = [f"v_exp_f32_e64 v{x}, v{x}" for x in regs]
            c = [f"v_cvt_pk_bf16_f32 v{regs[i]}, v{regs[2*i]}, v{regs[2*i+1]}" for i in range(4)]
            res += [f[0], f[1], x[0], x[1], f[2], f[3], x[2], x[3], f[4], c[0], f[5], c[1], x[4], x[5], f[6], f[7], x[6], x[7], c[2], c[3]]
        return res
    def step(n, fill=(), ldsw=()):
        a.wait(lg=f"F{n}")
        mf = mfmas(n)
        k = len(mf)
        for i, ins in enumerate(mf):
            e(ins)
            if i == 0 and pending and (n & 1): dma_emit(pending.pop(0))
            for f in fill[(len(fill) * i) // k:(len(fill) * (i + 1)) // k]: e(f)
            for (ins2, tag) in ldsw[(len(ldsw) * i) // k:(len(ldsw) * (i + 1)) // k]: a.lds(ins2, tag)
        if n + W <= LAST: reads(n + W)

    B3, A2, PK, B1, A0, RC, UN, X = 64, 112, 160, 184, 64, 112, 136, 160
    vWr, vSt, vSb, vSs = 47, 48, 49, 50
    def blk(jq, m): return (jq * 3 + m) * 1024
    for n in range(W): reads(n)
    stamp()
    for n in range(248):
        u, s = n >> 4, n & 15
        if s == 0: a.c(f"unit {u}")
        fill = []; ldsw = []
        if 8 <= n < 128 and (n & 7) >= 2: fill.append(max_ops((n >> 3) - 1)[(n & 7) - 2])
        if u >= 8 and u < 15 and s < 15:
            ops = p_ops(u - 7)
            fill += ops[(len(ops) * s) // 15:(len(ops) * (s + 1)) // 15]
        if n == 120:
            fill += ["v_and_b32 v30, 15, v0", "v_lshlrev_b32 v30, 4, v30", f"s_lshl_b32 s38, {sMh}, 8", f"s_add_u32 s38, s38, {2*SLOT}",
                     f"s_add_u32 s39, s38, {sRing}", f"v_add_u32 v{vSt}, s39, v30",
                     f"s_xor_b32 s39, {sKq}, 1", f"s_mul_i32 s39, s39, {RING}", "s_add_u32 s39, s39, s38", f"v_add_u32 v{vSs}, s39, v30"]
        if n == 240:
            fill += [f"s_lshl_b32 s38, {sMh}, 14", f"s_add_u32 s38, s38, {sRing}", f"v_add_u32 v{vWr}, s38, v{vLane16}",
                     f"v_add_u32 v{vSb}, {sSib}, v{vLane16}", "v_and_b32 v30, 15, v0", "v_lshlrev_b32 v51, 4, v30",
                     f"v_add_u32 v{vSt}, s38, v51", f"v_add_u32 v{vSs}, {sSib}, v51"]
        if 243 <= n <= 246:
            jq = n - 243
            ldsw += [(f"ds_write_b128 v{vWr}, {ar(O(12 + jq, m))} offset:{SLOT + blk(jq, m)}", "W3") for m in range(3)]
        if n == 246:
            ldsw += [(f"ds_write_b32 v{vSt}, a{Lr(m)} offset:{SLOT + 12288 + 4*m}", "W3") for m in range(3)]
        step(n, fill, ldsw)
        if n == 160:
            a.vmem(f"global_load_dword v{vNon}, v45, {sDbg} sc1", "nonce")
            if pretouch:
                a.vmem(f"buffer_load_dword v{vDum}, v{vZero}, {sW}, {sIn} offen sc1", "pre")
                a.vmem(f"buffer_load_dword v{vDum}, v{vZero}, {sW}, {sPin} offen sc1", "pre")
                a.vmem(f"buffer_load_dword v{vDum}, v{vZero}, {sO}, {sRow} offen sc1", "pre")
        if n == 127:
            a.c("row max over the workgroup's keys (sibling wave via LDS), scaled; first P tile")
            stamp()
            e("s_nop 7")
            for o in max_ops(15): e(o)
            for m in range(3): e(f"v_mov_b32 v{28+m}, v{vMx[m]}")
            e("s_nop 0")
            for m in range(3): e(f"v_permlane32_swap_b32 v{28+m}, v{vMx[m]}")
            for m in range(3): e(f"v_max_f32 v{vMx[m]}, v{vMx[m]}, v{28+m}")
            for m in range(3): e(f"v_mov_b32 v{28+m}, v{vMx[m]}")
            e("s_nop 0")
            for m in range(3): e(f"v_permlane16_swap_b32 v{28+m}, v{vMx[m]}")
            for m in range(3): e(f"v_max_f32 v{28+m}, v{vMx[m]}, v{28+m}")
            a.lds(f"ds_write_b96 v{vSt}, v[28:30]", "Mx")
            a.wait(lg="Mx")
            e("s_barrier")
            a.lds(f"ds_read_b96 v[32:34], v{vSs}", "Mr")
            a.wait(lg="Mr")
            for m in range(3): e(f"v_max_f32 v{vMx[m]}, v{28+m}, v{32+m}")
            for m in range(3): e(f"v_mul_f32 v{vMx[m]}, {sC}, v{vMx[m]}")
            for o in p_ops(0): e(o)
            e("s_nop 1")
    a.c("merge the quarter that goes to the partner workgroup and send it")
    stamp()
    a.wait(lg="W3")
    e("s_barrier")
    msgs = [(m, p) for m in range(3) for p in range(2)]
    for (m, p) in msgs:
        for jj in range(2):
            jq = 2 * p + jj
            a.lds(f"ds_read_b128 {vr(B3 + (jq*3+m)*4)}, v{vSb} offset:{SLOT + blk(jq, m)}", f"B3_{m}_{p}")
    a.lds(f"ds_read_b96 v[36:38], v{vSs} offset:{SLOT + 12288}", "Ls")
    rd2 = [f"v_accvgpr_read_b32 v{A2 + (jq*3+m)*4 + r}, a{O(8 + jq, m) + r}" for jq in range(4) for m in range(3) for r in range(4)]
    for n in range(248, 252):
        k = n - 248
        step(n, rd2[12*k - 12:12*k] if k else [])
    for o in rd2[36:]: e(o)
    for i, (m, p) in enumerate(msgs):
        a.wait(lg=f"B3_{m}_{p}")
        for jj in range(2):
            o = (((2*p + jj) * 3) + m) * 4
            for h in (0, 2): e(f"v_pk_add_f32 {vr(A2+o+h, 2)}, {vr(A2+o+h, 2)}, {vr(B3+o+h, 2)}")
        for jj in range(2):
            o = (((2*p + jj) * 3) + m) * 4
            for h in range(2): e(f"v_cvt_pk_bf16_f32 v{PK + 4*i + 2*jj + h}, v{A2+o+2*h}, v{A2+o+2*h+1}")
        if i == 4: e(f"s_add_u32 {sT}, {sPin}, 4096")
        a.vmem(f"buffer_store_dwordx4 {vr(PK + 4*i)}, v{vLane16}, {sW}, {sPin if i < 4 else sT} offen offset:{1024*(i & 3)} {xst}", "send")
    for m in range(3): e(f"v_accvgpr_read_b32 v{32+m}, a{Lr(m)}")
    for m in range(3): e(f"v_mov_b32 v{28+m}, v{vMx[m]}")
    a.wait(lg="Ls")
    for m in range(3): e(f"v_add_f32 v{32+m}, v{32+m}, v{36+m}")
    e("s_mov_b64 exec, 0xffff")
    a.vmem(f"buffer_store_dwordx3 v[28:30], v51, {sW}, {sT} offen offset:2048 {xst}", "send")
    a.vmem(f"buffer_store_dwordx3 v[32:34], v51, {sW}, {sT} offen offset:2304 {xst}", "send")
    e("s_mov_b64 exec, -1")
    stamp(False)
    a.c("finish the own quarter while the stores drain")
    for n in range(252, 256):
        jq = n - 252
        step(n, [], [(f"ds_write_b128 v{vWr}, {ar(O(4 + jq, m))} offset:{3*SLOT + blk(jq, m)}", "W1") for m in range(3)])
    a.wait(lg="W1")
    e("s_barrier")
    for jq in range(4):
        for m in range(3):
            a.lds(f"ds_read_b128 {vr(B1 + (jq*3+m)*4)}, v{vSb} offset:{3*SLOT + blk(jq, m)}", f"B1_{jq}")
    e("v_lshrrev_b32 v53, 4, v0"); e("v_lshlrev_b32 v53, 4, v53"); e("v_lshl_add_u32 v53, v51, 5, v53")
    e(f"s_mul_i32 s38, {sMh}, {48*512}"); e(f"s_add_u32 {sRow}, {sRow}, s38"); e(f"s_add_u32 {sRow}, {sRow}, {sOwn}")
    e(f"v_readfirstlane_b32 s42, v{vNon}")
    e("s_nop 1")
    for jq in range(4):
        for m in range(3):
            for r in range(4): e(f"v_accvgpr_read_b32 v{A0 + (jq*3+m)*4 + r}, a{O(jq, m) + r}")
    for jq in range(4):
        a.wait(lg=f"B1_{jq}")
        for m in range(3):
            o = (jq * 3 + m) * 4
            for h in (0, 2): e(f"v_pk_add_f32 {vr(A0+o+h, 2)}, {vr(A0+o+h, 2)}, {vr(B1+o+h, 2)}")
    e("s_mov_b32 s43, 0x100000")
    a.label("L_nonce")
    e("s_cmp_lg_u32 s42, 0"); e("s_cbranch_scc1 L_havenonce")
    e(f"global_load_dword v{vNon}, v45, {sDbg} sc1")
    e("s_sub_u32 s43, s43, 1"); e("s_waitcnt vmcnt(0)")
    e(f"v_readfirstlane_b32 s42, v{vNon}")
    e("s_cmp_lg_u32 s43, 0"); e("s_cbranch_scc1 L_nonce")
    a.label("L_havenonce")
    e("s_waitcnt vmcnt(0)")
    stamp(False)
    e("s_mov_b64 exec, 1")
    e(f"buffer_store_dword v{vNon}, v{vZero}, {sW}, {sT} offen offset:3072 sc1")
    e(f"s_add_u32 {sT}, {sIn}, 4096")
    e("s_mov_b32 s43, 0x100000")
    a.label("L_poll")
    e(f"buffer_load_dword v{vDum}, v{vZero}, {sW}, {sT} offen offset:3072 sc1")
    e("s_sub_u32 s43, s43, 1"); e("s_cmp_eq_u32 s43, 0"); e("s_cbranch_scc1 L_got")
    e("s_waitcnt vmcnt(0)")
    e(f"v_readfirstlane_b32 s38, v{vDum}")
    e("s_cmp_lg_u32 s38, s42"); e("s_cbranch_scc1 L_poll")
    a.label("L_got")
    e("s_mov_b64 exec, -1")
    stamp(False)
    a.vm = []
    a.vmem(f"buffer_load_dwordx3 v[36:38], v51, {sW}, {sT} offen offset:2048 {xld}", "rs")
    a.vmem(f"buffer_load_dwordx3 v[40:42], v51, {sW}, {sT} offen offset:2304 {xld}", "rs")
    for i in range(6):
        a.vmem(f"buffer_load_dwordx4 {vr(RC + 4*i)}, v{vLane16}, {sW}, {sIn if i < 4 else sT} offen offset:{1024*(i & 3)} {xld}", f"rc{i}")
    a.wait(vm="rs")
    fa = [54, 56, 58]; fb = [55, 57, 59]
    for m in range(3): e(f"v_max_f32 v{60+m}, v{28+m}, v{36+m}")
    for m in range(3):
        e(f"v_sub_f32 v{fa[m]}, v{28+m}, v{60+m}"); e(f"v_sub_f32 v{fb[m]}, v{36+m}, v{60+m}")
    for m in range(3):
        e(f"v_exp_f32 v{fa[m]}, v{fa[m]}"); e(f"v_exp_f32 v{fb[m]}, v{fb[m]}")
    for m in range(3): e(f"v_mul_f32 v{60+m}, v{fa[m]}, v{32+m}")
    for m in range(3): e(f"v_fmac_f32 v{60+m}, v{fb[m]}, v{40+m}")
    for m in range(3): e(f"v_rcp_f32 v{60+m}, v{60+m}")
    e("s_nop 0")
    for m in range(3):
        e(f"v_mul_f32 v{fa[m]}, v{fa[m]}, v{60+m}"); e(f"v_mul_f32 v{fb[m]}, v{fb[m]}, v{60+m}")
    for m in range(3):
        for jq in range(4):
            o = A0 + (jq * 3 + m) * 4
            for h in (0, 2): e(f"v_pk_mul_f32 {vr(o+h, 2)}, {vr(o+h, 2)}, {vr(fa[m], 2)} op_sel_hi:[1,0]")
    e("s_mov_b32 s38, 0xffff0000")
    for i, (m, p) in enumerate(msgs):
        a.wait(vm=f"rc{i}")
        u0 = UN + 8 * (i & 1)
        for d in range(4):
            e(f"v_lshlrev_b32 v{u0 + 2*d}, 16, v{RC + 4*i + d}"); e(f"v_and_b32 v{u0 + 2*d + 1}, s38, v{RC + 4*i + d}")
        for jj in range(2):
            o = A0 + ((2*p + jj) * 3 + m) * 4
            for h in range(2):
                e(f"v_pk_fma_f32 {vr(o + 2*h, 2)}, {vr(u0 + 4*jj + 2*h, 2)}, {vr(fa[m], 2)}, {vr(o + 2*h, 2)} op_sel:[0,1,0] op_sel_hi:[1,1,1]")
        x = X + 4 * i
        for jj in range(2):
            o = A0 + ((2*p + jj) * 3 + m) * 4
            e(f"v_cvt_pk_bf16_f32 v{x + 2*jj}, v{o}, v{o+1}"); e(f"v_cvt_pk_bf16_f32 v{x + 2*jj + 1}, v{o+2}, v{o+3}")
        e("s_nop 1")
        e(f"v_permlane32_swap_b32 v{x}, v{x+2}"); e(f"v_permlane32_swap_b32 v{x+1}, v{x+3}")
        if p == 0 and m: e(f"s_add_u32 {sRow}, {sRow}, 8192")
        else: e("s_nop 0")
        e(f"v_permlane16_swap_b32 v{x}, v{x+2}"); e(f"v_permlane16_swap_b32 v{x+1}, v{x+3}")
        off = " offset:64" if p else ""
        a.vmem(f"buffer_store_dwordx4 {vr(x)}, v53, {sO}, {sRow} offen{off} {opol}", "out")
    if tl:
        stamp(False)
        e("s_waitcnt vmcnt(0)")
        stamp(False)
        e("s_lshl_b32 s38, s2, 2"); e("s_add_u32 s38, s38, s3"); e("s_lshl_b32 s38, s38, 6"); e("s_add_u32 s38, s38, 0x1010000")
        e("v_mov_b32 v8, s38")
        for k in tls:
            e(f"v_mov_b32 v4, s{64+2*k}")
            e(f"global_store_dword v8, v4, s[58:59] offset:{4*k}")
    if spin:
        e("s_waitcnt vmcnt(0)")
        a.label("L_spin")
        e("s_memrealtime s[44:45]"); e("s_waitcnt lgkmcnt(0)")
        e("s_sub_u32 s44, s44, s40"); e(f"s_cmp_lt_u32 s44, {spin*100}"); e("s_cbranch_scc1 L_spin")
    if stamps:
        e("s_waitcnt vmcnt(0)")
        e("s_memrealtime s[42:43]")
        e("s_lshl_b32 s38, s2, 2"); e("s_add_u32 s38, s38, s3"); e("s_lshl_b32 s38, s38, 4"); e("s_add_u32 s38, s38, 0x1000000")
        e("s_waitcnt lgkmcnt(0)")
        e("v_mov_b32 v4, s40"); e("v_mov_b32 v5, s41"); e("v_mov_b32 v6, s42"); e("v_mov_b32 v7, s43"); e("v_mov_b32 v8, s38")
        e("s_mov_b64 exec, 1")
        e("global_store_dwordx4 v8, v[4:7], s[58:59]")
    a.label("L_end")
    e("s_endpgm")
    return kernel_file(a.text(), notes=NOTES, sgpr=100 if tl else 64)

def emit(variants):
    names = []
    for n, kw in variants.items():
        open(f"cdna_kernels/{n}.s", "w").write(gen(**kw))
        build_co(gen(stamps=True, **kw), f"bench/{n}")
        build_co(gen(stamps=True, tl=True, **kw), f"bench/{n}_tl")
        names.append(n)
    print(" ".join(n + ".co" for n in names)); print(" ".join(n + "_tl.co" for n in names))
    print(str(["bench/host"] + [f"bench/{n}.co" for n in names] + [f"bench/{n}_tl.co" for n in names]).replace("'", '"'))
    print(str([f"cdna_kernels/{n}.s" for n in names]).replace("'", '"'))

if __name__ == "__main__":
    emit({"c_nt": {}, "c_def": dict(pol=""), "c_nt_burst": dict(burst=True)})
```

```python
import re

def regs(tok):
    tok = tok.strip().lstrip("-")
    m = re.fullmatch(r"([vas])\[(\d+):(\d+)\]", tok)
    if m: return {(m.group(1), i) for i in range(int(m.group(2)), int(m.group(3)) + 1)}
    m = re.fullmatch(r"([vas])(\d+)", tok)
    if m: return {(m.group(1), int(m.group(2)))}
    if tok in ("m0", "vcc", "exec"): return {(tok, 0)}
    return set()

TRANS = ("v_exp_f32", "v_rcp_f32", "v_log_f32", "v_rsq_f32", "v_sqrt_f32")

def parse(line):
    s = line.split(";")[0].strip()
    if not s or s.endswith(":") or s.startswith("."): return None
    op, _, rest = s.partition(" ")
    toks = [t.strip() for t in rest.split(",")] if rest else []
    if toks: toks[-1] = toks[-1].split()[0] if toks[-1].split() else ""
    first = [t.split()[0] if t.split() else "" for t in toks]
    d = dict(op=op, text=s, w=set(), r=set(), c=set(), kind="other", states=1)
    if op.startswith("v_mfma"):
        d["kind"] = "mfma"; d["w"] = regs(first[0]); d["r"] = regs(first[1]) | regs(first[2]); d["c"] = regs(first[3])
    elif op.startswith("v_permlane"):
        d["kind"] = "perm"; d["w"] = regs(first[0]) | regs(first[1]); d["r"] = set(d["w"])
    elif op.startswith("v_readfirstlane") or op.startswith("v_readlane"):
        d["kind"] = "rdlane"; d["w"] = regs(first[0]); d["r"] = regs(first[1])
    elif op.startswith("v_"):
        d["kind"] = "trans" if op.startswith(TRANS) else "valu"
        d["w"] = regs(first[0])
        for t in first[1:]: d["r"] |= regs(t)
        if op.startswith(("v_fmac", "v_pk_fmac")): d["r"] |= d["w"]
    elif op.startswith("ds_read"):
        d["kind"] = "ds"; d["w"] = regs(first[0]); d["r"] = regs(first[1])
    elif op.startswith("ds_write"):
        d["kind"] = "ds"; d["r"] = regs(first[0]) | regs(first[1])
    elif op.startswith(("buffer_", "global_")):
        d["kind"] = "vmem"
        lds = s.endswith(" lds")
        store = "store" in op
        allr = set()
        for t in first: allr |= regs(t)
        if lds: d["r"] = allr | {("m0", 0)}
        elif store: d["r"] = allr
        else:
            d["w"] = regs(first[0])
            for t in first[1:]: d["r"] |= regs(t)
        d["lds"] = lds
        if store and ("x4" in op or "x3" in op):
            d["wide"] = regs(first[0]) if op.startswith("buffer") else regs(first[1])
    elif op == "s_nop":
        d["kind"] = "nop"; d["states"] = int(first[0]) + 1
    elif op.startswith("s_"):
        d["kind"] = "salu"
        if not op.startswith(("s_waitcnt", "s_barrier", "s_cmp", "s_cbranch", "s_branch", "s_endpgm")):
            d["w"] = regs(first[0])
        for t in first[1:] if d["w"] else first: d["r"] |= regs(t)
    return d

def check(lines):
    ins = [p for p in map(parse, lines) if p]
    bad = []
    isv = lambda k: k in ("valu", "trans", "perm", "rdlane")
    for i, c in enumerate(ins):
        dist = 0
        for j in range(i - 1, max(-1, i - 24), -1):
            p = ins[j]
            need = 0
            if p["kind"] == "mfma":
                if c["kind"] == "mfma":
                    if p["w"] & c["r"]: need = 8
                    elif p["w"] & c["c"] and p["w"] != c["c"]: need = 6
                elif isv(c["kind"]) and p["w"] & (c["r"] | c["w"]): need = 8
                elif c["kind"] in ("ds", "vmem") and p["w"] & (c["r"] | c["w"]): need = 8
                if isv(c["kind"]) and p["c"] & c["w"]: need = max(need, 3)
            elif isv(p["kind"]):
                pw = {x for x in p["w"] if x[0] in "va"}; ps = {x for x in p["w"] if x[0] == "s"}
                if c["kind"] == "mfma" and pw & (c["r"] | c["c"]): need = 2
                if c["kind"] == "perm" and pw & c["r"]: need = 2
                if c["kind"] == "rdlane" and pw & c["r"]: need = 1
                if p["kind"] == "trans" and c["kind"] in ("valu", "perm", "rdlane") and pw & c["r"]: need = max(need, 1)
                if ps & c["r"]:
                    if c["kind"] == "vmem": need = 5
                    elif isv(c["kind"]): need = max(need, 2)
            elif p["kind"] == "salu" and ("m0", 0) in p["w"] and c.get("lds"): need = 1
            elif p["kind"] == "vmem" and p.get("wide") and p["wide"] & c["w"]: need = 2 if isv(c["kind"]) else 1
            if need > dist: bad.append((need, dist, p["text"], c["text"]))
            dist += p["states"]
    return bad

def estimate(lines):
    t = 0; mf_free = 0; valu_block = 0; last_valu_end = -100
    for p in map(parse, lines):
        if not p: continue
        k = p["kind"]
        if k == "mfma":
            t = max(t, mf_free); mf_free = t + 16; valu_block = t + 8; t += 4
        elif k in ("valu", "perm", "rdlane", "trans"):
            t = max(t, valu_block)
            if p["op"].startswith("v_pk"): t = max(t, mf_free + 8)
            t += 8 if k == "trans" else 4; last_valu_end = t
        elif k in ("ds", "vmem"):
            t = max(t, valu_block)
            if t - last_valu_end < 8: t = last_valu_end + 8
            t += 8 if k == "vmem" else 4
        elif k == "nop": t += 4 * p["states"]
        else: t += 4
    return t

if __name__ == "__main__":
    import sys
    L = open(sys.argv[1]).read().split("\n")
    for b in check(L): print("HAZARD need %d have %d:\n   %s\n   %s" % b)
    print("estimate", estimate(L))
```

```python
import sys, struct
from asmlib import *

C_SCALE = 0.0625 * 1.4426950408889634
def f32bits(x): return struct.unpack("<I", struct.pack("<f", x))[0]

RING = 81920
SLOT = 16384
NSLOT = 5
QOFF = 57344
LAST = 255

NOTES = """; GQA attention. Workgroup = 96 query rows (one q head) x 512 keys, wave = 48 rows x 256 keys.
"""

def gen(pol="nt", qpol="", opol="", W=7, LA=6, pro=(2, 3), stamps=False, tl=False, spin=0, xst="sc1", xld="sc1", pretouch=True, x_nodma=False, x_nobar=False, x_nofill=False, x_noread=False, x_nowait=False, clk=False):
    a = Asm(); e = a.e
    vKd = [1, 2, 3, 4]; vKr = [5, 6, 7, 8]; vVr = list(range(9, 17))
    vMx = [17, 18, 19]; vOnes = 20; vNon = 24; vDum = 25; vZero = 26; vLane16 = 27
    def S(kt, m, r=0): return 64 + (kt * 3 + m) * 4 + r
    def vr(b, n=4): return f"v[{b}:{b+n-1}]"
    def ar(b, n=4): return f"a[{b}:{b+n-1}]"
    def Q(m, s): return (m * 8 + s) * 4
    def O(j, m): return (j * 3 + m) * 4
    def Lr(m): return 192 + 4 * m
    def F(n): return 204 + 4 * (n % W)
    sQ, sK, sV, sO, sW = "s[12:15]", "s[16:19]", "s[20:23]", "s[24:27]", "s[48:51]"
    sKb, sDst, sRing, sT, sC, sRow, sOwn = "s28", "s29", "s30", "s31", "s32", "s33", "s34"
    sMh, sKq, sGrp, sMem, sIn, sPin, sSib = "s35", "s46", "s47", "s52", "s53", "s54", "s55"
    sDbg = "s[56:57]"
    MF = "v_mfma_f32_16x16x32_bf16"
    tls = []
    def stamp(drain=True):
        if tl:
            k = len(tls); tls.append(k)
            if drain: e("s_waitcnt lgkmcnt(0)")
            e(f"{'s_memtime' if clk else 's_memrealtime'} s[{64+2*k}:{65+2*k}]")
            e("s_waitcnt lgkmcnt(0)")

    e("s_cmp_ge_u32 s2, 256"); e("s_cbranch_scc1 L_end")
    e("s_memrealtime s[40:41]")
    e("s_load_dwordx4 s[4:7], s[0:1], 0"); e("s_load_dwordx4 s[8:11], s[0:1], 16"); e("s_load_dwordx4 s[56:59], s[0:1], 32")
    a.c("pull the kernel's code into L2")
    e("s_getpc_b64 s[36:37]")
    e("v_lshlrev_b32 v28, 7, v0")
    e("v_min_u32 v28, L_end - L_pc, v28")
    a.label("L_pc")
    a.vmem(f"global_load_dword v{vDum}, v28, s[36:37]", "code")
    e("v_lshrrev_b32 v30, 6, v0"); e("v_and_b32 v0, 63, v0")
    e("v_readfirstlane_b32 s3, v30")
    a.c("workgroup -> (kv group, q head of the group, key half); ids equal mod 8 work on one group")
    e(f"s_and_b32 {sGrp}, s2, 7"); e("s_lshr_b32 s39, s2, 5"); e("s_lshl_b32 s39, s39, 3"); e(f"s_add_u32 {sGrp}, {sGrp}, s39")
    e(f"s_bfe_u32 {sMem}, s2, 0x20003")
    e(f"s_and_b32 s39, {sMem}, 1"); e(f"s_lshl_b32 s38, {sGrp}, 1"); e("s_add_u32 s38, s38, s39"); e(f"s_mul_i32 {sRow}, s38, {96*512}")
    e(f"s_lshr_b32 s39, {sMem}, 1"); e(f"s_lshl_b32 {sKb}, {sGrp}, 19"); e("s_lshl_b32 s38, s39, 18"); e(f"s_add_u32 {sKb}, {sKb}, s38")
    e("s_lshl_b32 s38, s3, 13"); e(f"s_add_u32 {sKb}, {sKb}, s38")
    e(f"s_and_b32 {sMh}, s3, 1"); e(f"s_lshr_b32 {sKq}, s3, 1")
    e(f"s_lshl_b32 {sOwn}, s39, 1"); e(f"s_add_u32 {sOwn}, {sOwn}, {sKq}"); e(f"s_lshl_b32 {sOwn}, {sOwn}, 7")
    e(f"s_mul_i32 {sRing}, {sKq}, {RING}"); e(f"s_lshl_b32 s38, {sMh}, 13"); e(f"s_add_u32 {sDst}, {sRing}, s38")
    a.c("K / V / Q DMA source offsets")
    e("v_lshrrev_b32 v30, 5, v0"); e("v_and_b32 v31, 31, v0"); e("v_lshlrev_b32 v32, 1, v30"); e("v_xor_b32 v31, v31, v32")
    e("v_lshlrev_b32 v31, 4, v31"); e(f"v_lshl_add_u32 v{vKd[0]}, v30, 9, v31")
    for n in range(1, 4): e(f"v_xor_b32 v{vKd[n]}, {64*n}, v{vKd[0]}")
    e(f"s_lshl_b32 s38, {sMh}, 7")
    e(f"v_xor_b32 v33, s38, v{vKd[0]}"); e(f"v_xor_b32 v34, s38, v{vKd[1]}")
    e("s_lshl_b32 s39, s3, 11")
    e(f"s_add_u32 {sT}, {sRow}, s39")
    e("s_waitcnt lgkmcnt(0)")
    if tl:
        tls.append(0)
        if clk: e("s_memtime s[64:65]"); e("s_waitcnt lgkmcnt(0)")
        else: e("s_mov_b32 s64, s40")
    e("s_mov_b32 s12, s4"); e("s_mov_b32 s13, s5"); e("s_mov_b32 s14, 6291456"); e("s_mov_b32 s15, 0x20000")
    e("s_mov_b32 s16, s6"); e("s_mov_b32 s17, s7"); e("s_mov_b32 s18, 0x2000000"); e("s_mov_b32 s19, 0x20000")
    for t in range(6):
        e(f"s_add_u32 m0, s39, {(t // 3)*RING + QOFF + (t % 3)*8192}")
        if t: e(f"s_add_u32 {sT}, {sT}, 8192")
        else: e("s_nop 0")
        a.vmem(f"buffer_load_dwordx4 v33, {sQ}, {sT} offen {qpol} lds", "Q")
        a.vmem(f"buffer_load_dwordx4 v34, {sQ}, {sT} offen offset:1024 {qpol} lds", "Q")

    order = [12, 13, 14, 15, 8, 9, 10, 11, 4, 5, 6, 7, 0, 1, 2, 3]
    def dma_list(u):
        out = []
        slot = (u % NSLOT) * SLOT
        srd = sK if u < 8 else sV
        for g in range(2):
            pre = []
            if u == 8 and g == 0:
                pre += [f"v_xor_b32 v{vKd[n]}, {sOwn}, v{vKd[n]}" for n in range(4)]
            pre += [f"s_add_u32 m0, {sDst}, {slot + 4096*g}", f"s_add_u32 {sT}, {sKb}, {(u & 7)*32768 + 4096*g}"]
            for n in range(4):
                off = f" offset:{1024*n}" if n else ""
                out.append((u, pre if n == 0 else [], f"buffer_load_dwordx4 v{vKd[n]}, {srd}, {sT} offen{off} {pol} lds"))
        return out
    def dma_emit(item):
        u, pre, ins = item
        for p in pre: e(p)
        a.vmem(ins, f"U{u}")
    early = [it for u in range(3) for it in dma_list(u)]
    for it in early[:4*pro[0]]: dma_emit(it)
    e("s_mov_b32 s20, s8"); e("s_mov_b32 s21, s9"); e("s_mov_b32 s22, 0x2000000"); e("s_mov_b32 s23, 0x20000")
    e("s_mov_b32 s24, s10"); e("s_mov_b32 s25, s11"); e("s_mov_b32 s26, 6291456"); e("s_mov_b32 s27, 0x20000")
    e("s_mov_b32 s48, s58"); e("s_mov_b32 s49, s59"); e("s_mov_b32 s50, 0x800000"); e("s_mov_b32 s51, 0x20000")
    e(f"s_mov_b32 {sC}, {hex(f32bits(C_SCALE))}")
    e("s_lshl_b32 s38, s2, 2"); e("s_add_u32 s38, s38, s3"); e(f"s_lshl_b32 {sIn}, s38, 13"); e(f"s_xor_b32 {sPin}, {sIn}, {64 << 13}")
    e(f"s_xor_b32 s38, {sKq}, 1"); e(f"s_mul_i32 {sSib}, s38, {RING}"); e(f"s_lshl_b32 s38, {sMh}, 14"); e(f"s_add_u32 {sSib}, {sSib}, s38")
    a.c("the group's first workgroup publishes the launch nonce")
    e(f"s_lshl_b32 s38, {sGrp}, 2"); e(f"v_mov_b32 v{vZero}, 0"); e("v_mov_b32 v45, s38")
    e(f"s_or_b32 s38, {sMem}, s3"); e("s_cmp_eq_u32 s38, 0"); e("s_cbranch_scc0 L_nopub")
    e("s_or_b32 s38, s40, 1"); e("v_mov_b32 v46, s38")
    e(f"global_store_dword v45, v46, {sDbg} sc1")
    a.label("L_nopub")
    a.c("K fragment read addresses (v35..v38: the same pattern for the Q tiles)")
    e("v_and_b32 v30, 15, v0"); e("v_lshrrev_b32 v31, 4, v0"); e("v_and_b32 v32, 7, v0"); e("v_lshlrev_b32 v32, 1, v32")
    e("v_xor_b32 v32, v32, v31"); e("v_lshlrev_b32 v32, 4, v32"); e("v_lshl_add_u32 v35, v30, 9, v32")
    for s in range(1, 4): e(f"v_xor_b32 v{35+s}, {64*s}, v35")
    e(f"s_mul_i32 s38, {sMh}, {RING}"); e(f"s_add_u32 s38, s38, {QOFF}")
    for s in range(4):
        e(f"v_add_u32 v{vKr[s]}, {sRing}, v{35+s}")
        e(f"v_add_u32 v{35+s}, s38, v{35+s}")
    a.c("V transposed-read addresses")
    e("v_lshrrev_b32 v43, 2, v0"); e("v_and_b32 v32, 7, v43"); e("v_lshlrev_b32 v32, 5, v32")
    e("v_and_b32 v44, 3, v0"); e("v_lshlrev_b32 v44, 3, v44"); e("v_lshl_add_u32 v44, v43, 9, v44"); e(f"s_add_u32 s38, {sRing}, 0x8000"); e("v_add_u32 v44, s38, v44")
    for j in range(8):
        e(f"v_xor_b32 v43, {32*j}, v32"); e(f"v_add_u32 v{vVr[j]}, v43, v44")
    for i in range(4): e(f"v_mov_b32 v{vOnes+i}, 0x3f803f80")
    e(f"v_lshlrev_b32 v{vLane16}, 4, v0")
    stamp()
    a.wait(vm="Q")
    stamp()
    e("s_barrier")
    for m in range(3):
        for s in range(8):
            a.lds(f"ds_read_b128 {ar(Q(m, s))}, v{35 + (s & 3)} offset:{m*8192 + 256*(s >> 2)}", "Qf")
    for it in early[4*pro[0]:4*pro[1]]: dma_emit(it)
    a.wait(lg="all")

    pending = early[4*pro[1]:]
    bias = {r: 0 for r in vKr}; bias.update({r: 32768 for r in vVr})
    def rd_info(n):
        u, s = n >> 4, n & 15
        slot = (u % NSLOT) * SLOT
        if u < 8:
            o = slot + 8192 * (s >> 3) + 256 * ((s >> 2) & 1)
            return vKr[s & 3], o, o
        j = order[s]
        return vVr[j & 7], slot + 256 * (j >> 3), slot + 256 * (j >> 3) + 8192
    def rebase(n):
        if n > LAST: return None
        reg, lo, hi = rd_info(n)
        if hi - bias[reg] > 65535:
            bias[reg] = 32768; return f"v_add_u32 v{reg}, 0x8000, v{reg}"
        if lo < bias[reg]:
            bias[reg] = 0; return f"v_subrev_u32 v{reg}, 0x8000, v{reg}"
        return None
    def rd_list(n):
        if n > LAST: return []
        reg, lo, hi = rd_info(n)
        o = lo - bias[reg]
        assert 0 <= o and hi - bias[reg] <= 65535
        if n < 128: return [(f"ds_read_b128 {ar(F(n))}, v{reg} offset:{o}", f"F{n}")]
        return [(f"ds_read_b64_tr_b16 {ar(F(n), 2)}, v{reg} offset:{o}", f"F{n}"),
                (f"ds_read_b64_tr_b16 {ar(F(n)+2, 2)}, v{reg} offset:{o + 8192}", f"F{n}")]
    def unit_sync(u):
        assert all(it[0] > u for it in pending)
        if not (x_nodma and u > 3): a.wait(vm=f"U{u}")
        if not (x_nobar and u > 0): e("s_barrier")
        if u + 3 < 16 and not (x_nodma and u > 0): pending.extend(dma_list(u + 3))
    def mfmas(n):
        u, s = n >> 4, n & 15
        out = []
        if u < 8:
            kt, ss = n >> 3, n & 7
            for m in range(3):
                d = vr(S(kt, m))
                out.append(f"{MF} {d}, {ar(F(n))}, {ar(Q(m, ss))}, {d if ss else 0}")
        else:
            kp = u - 8
            j = order[s]
            for m in range(3):
                d = ar(O(j, m))
                out.append(f"{MF} {d}, {ar(F(n))}, {vr(S(2*kp, m))}, {d if kp else 0}")
            if s < 3:
                d = ar(Lr(s))
                out.append(f"{MF} {d}, {vr(vOnes)}, {vr(S(2*kp, s))}, {d if kp else 0}")
        return out
    def max_ops(kt):
        out = []
        for m in range(3):
            if kt == 0:
                out.append(f"v_max3_f32 v{vMx[m]}, v{S(0,m,0)}, v{S(0,m,1)}, v{S(0,m,2)}")
                out.append(f"v_max_f32_e64 v{vMx[m]}, v{vMx[m]}, v{S(0,m,3)}")
            else:
                out.append(f"v_max3_f32 v{vMx[m]}, v{vMx[m]}, v{S(kt,m,0)}, v{S(kt,m,1)}")
                out.append(f"v_max3_f32 v{vMx[m]}, v{vMx[m]}, v{S(kt,m,2)}, v{S(kt,m,3)}")
        return out
    def p_items(kp):
        res = []
        for m in range(3):
            regs = [S(2*kp, m, r) for r in range(4)] + [S(2*kp+1, m, r) for r in range(4)]
            b = len(res)
            res += [[f"v_fma_f32 v{x}, v{x}, {sC}, -v{vMx[m]}", 1, []] for x in regs]
            res += [[f"v_exp_f32_e64 v{x}, v{x}", 2, [b + i]] for i, x in enumerate(regs)]
            for i in range(4):
                res.append([f"v_cvt_pk_bf16_f32 v{regs[i]}, v{regs[2*i]}, v{regs[2*i+1]}", 1,
                            [b + 8 + 2*i, b + 9 + 2*i] + ([b + 15 + i] if i else [])])
        return res
    def p_ops(kp):
        it = p_items(kp); out = []
        for m in range(3):
            f = [x[0] for x in it[20*m:20*m+8]]; x = [y[0] for y in it[20*m+8:20*m+16]]; c = [y[0] for y in it[20*m+16:20*m+20]]
            out += [f[0], f[1], x[0], x[1], f[2], f[3], x[2], x[3], f[4], c[0], f[5], c[1], x[4], x[5], f[6], f[7], x[6], x[7], c[2], c[3]]
        return out
    class Queue:
        def __init__(self, items):
            self.items = items; self.done = {}; self.left = list(range(len(items)))
        def demand(self): return sum(self.items[i][1] for i in self.left)
        def count(self, slots): return sum(1 for i in self.left if self.items[i][1] == slots)
        def ready(self, slots):
            now = len(a.lines)
            return [i for i in self.left if self.items[i][1] == slots
                    and all(d in self.done and (self.items[d][1] == 1 or self.done[d] < now - 1) for d in self.items[i][2])]
        def take(self, slots):
            r = self.ready(slots)
            if not r: return False
            cv = [i for i in r if "cvt" in self.items[i][0]]
            i = cv[0] if cv else r[0]
            self.done[i] = len(a.lines); e(self.items[i][0]); self.left.remove(i); return True
    state = dict(q=Queue([]))
    def dma_due(n):
        left = (15 - ((n + LA) & 15)) // 2 + 1
        return bool(pending) and bool(n & 1 or len(pending) > left)
    def supply(n, gi, end):
        tot = 0; pend = len(pending)
        for k in range(n, end):
            g = len(mfmas(k))
            tot += 2 * (g - (gi + 1 if k == n else 0))
            if k > n:
                tot -= 2 if k + LA <= LAST else 0
                if k & 1 and (pend or (k + LA) & 15 < LA and (k + LA) >> 4 < 13): tot -= 2; pend = max(0, pend - 1)
        return tot
    def step(n, extra=(), ldsw=(), end=None):
        q = state["q"]
        extra = list(extra); ldsw = list(ldsw)
        r = n + LA
        nxt = rebase(r + 1) if False else None
        rds = [] if (x_noread and 16 <= r < 240) else rd_list(r)
        mf = mfmas(n); k = len(mf)
        due = dma_due(n)
        both = len(rds) == 2 and (due or (q.count(2) * 3 > q.count(1) * 2 and len(q.ready(2)) >= 2) or not q.ready(1))
        for gi, ins in enumerate(mf):
            e(ins)
            used = 0; nfree = 0
            if gi == k - 1 and n < LAST and not ((x_noread or x_nowait) and 16 <= n + 1 < 240):
                a.wait(lg=f"F{n+1}"); nfree += 1
            if gi == 0 and r <= LAST and (r & 15) == 0:
                unit_sync(r >> 4); nfree += 2
            if gi < 2 and pending and pending[0][1] and (gi == 0 or not due):
                pre = pending[0][1]
                while pre and pre[0].startswith("v_"): extra.append(pre.pop(0))
                cnt = len(pre) if due else 1
                for p in pre[:cnt]: e(p); nfree += 1
                del pre[:cnt]
            used += max(0, nfree - 1)
            if gi == 0 and rds:
                for x in (rds if both else rds[:1]): a.lds(*x); used += 1
            if gi == 1 and len(rds) == 2 and not both:
                a.lds(*rds[1]); used += 1
            if ldsw and gi < 3:
                a.lds(*ldsw.pop(0)); used += 1
            if gi == 1 and due and pending and not pending[0][1] and not any(x.startswith("v_xor") for x in extra):
                dma_emit(pending.pop(0)); used += 2
            if gi == k - 1:
                rb = rebase(r + 1)
                if rb: extra.insert(0, rb)
            while extra and (used < 2 or gi == k - 1):
                x = extra.pop(0); e(x); used += 1
            if x_nofill: continue
            while used < 2 and q.left:
                if used == 0 and q.take(2): used += 2
                elif q.take(1): used += 1
                else: break
            if end is not None:
                while q.left and q.demand() > supply(n, gi, end):
                    if not (q.take(1) or q.take(2)): break
        while ldsw: a.lds(*ldsw.pop(0))

    B3, A2, PK, B1, A0, RC, UN, X = 64, 112, 160, 184, 64, 112, 136, 160
    vWr, vSt, vSb, vSs = 47, 48, 49, 50
    def blk(jq, m): return (jq * 3 + m) * 1024
    unit_sync(0)
    for n in range(LA):
        for x in rd_list(n): a.lds(*x)
    a.wait(lg="F0")
    stamp()
    for n in range(248):
        u, s = n >> 4, n & 15
        if s == 0:
            a.c(f"unit {u}")
            if 8 <= u < 15: state["q"] = Queue(p_items(u - 7))
        fill = []; ldsw = []
        if 8 <= n < 128 and (n & 7) >= 2 and not x_nofill: fill.append(max_ops((n >> 3) - 1)[(n & 7) - 2])
        if n == 118:
            fill += ["v_and_b32 v30, 15, v0", "v_lshlrev_b32 v30, 4, v30", f"s_lshl_b32 s38, {sMh}, 8", f"s_add_u32 s38, s38, {2*SLOT}",
                     f"s_add_u32 s39, s38, {sRing}", f"v_add_u32 v{vSt}, s39, v30"]
        if n == 120:
            fill += [f"s_xor_b32 s39, {sKq}, 1", f"s_mul_i32 s39, s39, {RING}", "s_add_u32 s39, s39, s38", f"v_add_u32 v{vSs}, s39, v30"]
        if n == 240:
            fill += [f"s_lshl_b32 s38, {sMh}, 14", f"s_add_u32 s38, s38, {sRing}", f"v_add_u32 v{vWr}, s38, v{vLane16}",
                     f"v_add_u32 v{vSb}, {sSib}, v{vLane16}"]
        if n == 241:
            fill += ["v_and_b32 v30, 15, v0", "v_lshlrev_b32 v51, 4, v30", f"v_add_u32 v{vSt}, s38, v51", f"v_add_u32 v{vSs}, {sSib}, v51"]
        if 243 <= n <= 246:
            jq = n - 243
            ldsw += [(f"ds_write_b128 v{vWr}, {ar(O(12 + jq, m))} offset:{SLOT + blk(jq, m)}", "W3") for m in range(3)]
        if n == 247:
            ldsw += [(f"ds_write_b32 v{vSt}, a{Lr(m)} offset:{SLOT + 12288 + 4*m}", "W3") for m in range(3)]
        step(n, fill, ldsw, end=(u + 1) * 16 if 8 <= u < 15 else None)
        if s == 15 and not x_nofill: assert not state["q"].left, (n, state["q"].left)
        if n == 160:
            a.vmem(f"global_load_dword v{vNon}, v45, {sDbg} sc1", "nonce")
            if pretouch:
                a.vmem(f"buffer_load_dword v{vDum}, v{vZero}, {sW}, {sIn} offen sc1", "pre")
                a.vmem(f"buffer_load_dword v{vDum}, v{vZero}, {sW}, {sPin} offen sc1", "pre")
                a.vmem(f"buffer_load_dword v{vDum}, v{vZero}, {sO}, {sRow} offen sc1", "pre")
        if n == 127:
            a.c("row max over the workgroup's keys (sibling wave via LDS), scaled; first P tile")
            stamp()
            e("s_nop 7")
            for o in max_ops(15): e(o)
            for m in range(3): e(f"v_mov_b32 v{28+m}, v{vMx[m]}")
            e("s_nop 0")
            for m in range(3): e(f"v_permlane32_swap_b32 v{28+m}, v{vMx[m]}")
            for m in range(3): e(f"v_max_f32 v{vMx[m]}, v{vMx[m]}, v{28+m}")
            for m in range(3): e(f"v_mov_b32 v{28+m}, v{vMx[m]}")
            e("s_nop 0")
            for m in range(3): e(f"v_permlane16_swap_b32 v{28+m}, v{vMx[m]}")
            for m in range(3): e(f"v_max_f32 v{28+m}, v{vMx[m]}, v{28+m}")
            a.lds(f"ds_write_b96 v{vSt}, v[28:30]", "Mx")
            a.wait(lg="Mx")
            e("s_barrier")
            a.lds(f"ds_read_b96 v[32:34], v{vSs}", "Mr")
            a.wait(lg="Mr")
            for m in range(3): e(f"v_max_f32 v{vMx[m]}, v{28+m}, v{32+m}")
            for m in range(3): e(f"v_mul_f32 v{vMx[m]}, {sC}, v{vMx[m]}")
            for o in p_ops(0): e(o)
            e("s_nop 1")
    a.c("merge the quarter that goes to the partner workgroup and send it")
    stamp()
    a.wait(lg="W3")
    e("s_barrier")
    msgs = [(m, p) for m in range(3) for p in range(2)]
    for (m, p) in msgs:
        for jj in range(2):
            jq = 2 * p + jj
            a.lds(f"ds_read_b128 {vr(B3 + (jq*3+m)*4)}, v{vSb} offset:{SLOT + blk(jq, m)}", f"B3_{m}_{p}")
    a.lds(f"ds_read_b96 v[36:38], v{vSs} offset:{SLOT + 12288}", "Ls")
    rd2 = [f"v_accvgpr_read_b32 v{A2 + (jq*3+m)*4 + r}, a{O(8 + jq, m) + r}" for jq in range(4) for m in range(3) for r in range(4)]
    for n in range(248, 252):
        k = n - 248
        step(n, rd2[12*k - 12:12*k] if k else [])
    for o in rd2[36:]: e(o)
    for i, (m, p) in enumerate(msgs):
        a.wait(lg=f"B3_{m}_{p}")
        for jj in range(2):
            o = (((2*p + jj) * 3) + m) * 4
            for h in (0, 2): e(f"v_pk_add_f32 {vr(A2+o+h, 2)}, {vr(A2+o+h, 2)}, {vr(B3+o+h, 2)}")
        for jj in range(2):
            o = (((2*p + jj) * 3) + m) * 4
            for h in range(2): e(f"v_cvt_pk_bf16_f32 v{PK + 4*i + 2*jj + h}, v{A2+o+2*h}, v{A2+o+2*h+1}")
        if i == 4: e(f"s_add_u32 {sT}, {sPin}, 4096")
        a.vmem(f"buffer_store_dwordx4 {vr(PK + 4*i)}, v{vLane16}, {sW}, {sPin if i < 4 else sT} offen offset:{1024*(i & 3)} {xst}", "send")
    for m in range(3): e(f"v_accvgpr_read_b32 v{32+m}, a{Lr(m)}")
    for m in range(3): e(f"v_mov_b32 v{28+m}, v{vMx[m]}")
    a.wait(lg="Ls")
    for m in range(3): e(f"v_add_f32 v{32+m}, v{32+m}, v{36+m}")
    e("s_mov_b64 exec, 0xffff")
    a.vmem(f"buffer_store_dwordx3 v[28:30], v51, {sW}, {sT} offen offset:2048 {xst}", "send")
    a.vmem(f"buffer_store_dwordx3 v[32:34], v51, {sW}, {sT} offen offset:2304 {xst}", "send")
    e("s_mov_b64 exec, -1")
    stamp(False)
    a.c("finish the own quarter while the stores drain")
    for n in range(252, 256):
        jq = n - 252
        step(n, [], [(f"ds_write_b128 v{vWr}, {ar(O(4 + jq, m))} offset:{3*SLOT + blk(jq, m)}", "W1") for m in range(3)])
    a.wait(lg="W1")
    e("s_barrier")
    for jq in range(4):
        for m in range(3):
            a.lds(f"ds_read_b128 {vr(B1 + (jq*3+m)*4)}, v{vSb} offset:{3*SLOT + blk(jq, m)}", f"B1_{jq}")
    e("v_lshrrev_b32 v53, 4, v0"); e("v_lshlrev_b32 v53, 4, v53"); e("v_lshl_add_u32 v53, v51, 5, v53")
    e(f"s_mul_i32 s38, {sMh}, {48*512}"); e(f"s_add_u32 {sRow}, {sRow}, s38"); e(f"s_add_u32 {sRow}, {sRow}, {sOwn}")
    e(f"v_readfirstlane_b32 s42, v{vNon}")
    e("s_nop 1")
    for jq in range(4):
        for m in range(3):
            for r in range(4): e(f"v_accvgpr_read_b32 v{A0 + (jq*3+m)*4 + r}, a{O(jq, m) + r}")
    for jq in range(4):
        a.wait(lg=f"B1_{jq}")
        for m in range(3):
            o = (jq * 3 + m) * 4
            for h in (0, 2): e(f"v_pk_add_f32 {vr(A0+o+h, 2)}, {vr(A0+o+h, 2)}, {vr(B1+o+h, 2)}")
    e("s_mov_b32 s43, 0x100000")
    a.label("L_nonce")
    e("s_cmp_lg_u32 s42, 0"); e("s_cbranch_scc1 L_havenonce")
    e(f"global_load_dword v{vNon}, v45, {sDbg} sc1")
    e("s_sub_u32 s43, s43, 1"); e("s_waitcnt vmcnt(0)")
    e(f"v_readfirstlane_b32 s42, v{vNon}")
    e("s_cmp_lg_u32 s43, 0"); e("s_cbranch_scc1 L_nonce")
    a.label("L_havenonce")
    e("s_waitcnt vmcnt(0)")
    stamp(False)
    e("s_mov_b64 exec, 1")
    e(f"buffer_store_dword v{vNon}, v{vZero}, {sW}, {sT} offen offset:3072 sc1")
    e(f"s_add_u32 {sT}, {sIn}, 4096")
    e("s_mov_b32 s43, 0x100000")
    a.label("L_poll")
    e(f"buffer_load_dword v{vDum}, v{vZero}, {sW}, {sT} offen offset:3072 sc1")
    e("s_sub_u32 s43, s43, 1"); e("s_cmp_eq_u32 s43, 0"); e("s_cbranch_scc1 L_got")
    e("s_waitcnt vmcnt(0)")
    e(f"v_readfirstlane_b32 s38, v{vDum}")
    e("s_cmp_lg_u32 s38, s42"); e("s_cbranch_scc1 L_poll")
    a.label("L_got")
    e("s_mov_b64 exec, -1")
    stamp(False)
    a.vm = []
    a.vmem(f"buffer_load_dwordx3 v[36:38], v51, {sW}, {sT} offen offset:2048 {xld}", "rs")
    a.vmem(f"buffer_load_dwordx3 v[40:42], v51, {sW}, {sT} offen offset:2304 {xld}", "rs")
    for i in range(6):
        a.vmem(f"buffer_load_dwordx4 {vr(RC + 4*i)}, v{vLane16}, {sW}, {sIn if i < 4 else sT} offen offset:{1024*(i & 3)} {xld}", f"rc{i}")
    a.wait(vm="rs")
    fa = [54, 56, 58]; fb = [55, 57, 59]
    for m in range(3): e(f"v_max_f32 v{60+m}, v{28+m}, v{36+m}")
    for m in range(3):
        e(f"v_sub_f32 v{fa[m]}, v{28+m}, v{60+m}"); e(f"v_sub_f32 v{fb[m]}, v{36+m}, v{60+m}")
    for m in range(3):
        e(f"v_exp_f32 v{fa[m]}, v{fa[m]}"); e(f"v_exp_f32 v{fb[m]}, v{fb[m]}")
    for m in range(3): e(f"v_mul_f32 v{60+m}, v{fa[m]}, v{32+m}")
    for m in range(3): e(f"v_fmac_f32 v{60+m}, v{fb[m]}, v{40+m}")
    for m in range(3): e(f"v_rcp_f32 v{60+m}, v{60+m}")
    e("s_nop 0")
    for m in range(3):
        e(f"v_mul_f32 v{fa[m]}, v{fa[m]}, v{60+m}"); e(f"v_mul_f32 v{fb[m]}, v{fb[m]}, v{60+m}")
    for m in range(3):
        for jq in range(4):
            o = A0 + (jq * 3 + m) * 4
            for h in (0, 2): e(f"v_pk_mul_f32 {vr(o+h, 2)}, {vr(o+h, 2)}, {vr(fa[m], 2)} op_sel_hi:[1,0]")
    e("s_mov_b32 s38, 0xffff0000")
    for i, (m, p) in enumerate(msgs):
        a.wait(vm=f"rc{i}")
        u0 = UN + 8 * (i & 1)
        for d in range(4):
            e(f"v_lshlrev_b32 v{u0 + 2*d}, 16, v{RC + 4*i + d}"); e(f"v_and_b32 v{u0 + 2*d + 1}, s38, v{RC + 4*i + d}")
        for jj in range(2):
            o = A0 + ((2*p + jj) * 3 + m) * 4
            for h in range(2):
                e(f"v_pk_fma_f32 {vr(o + 2*h, 2)}, {vr(u0 + 4*jj + 2*h, 2)}, {vr(fa[m], 2)}, {vr(o + 2*h, 2)} op_sel:[0,1,0] op_sel_hi:[1,1,1]")
        x = X + 4 * i
        for jj in range(2):
            o = A0 + ((2*p + jj) * 3 + m) * 4
            e(f"v_cvt_pk_bf16_f32 v{x + 2*jj}, v{o}, v{o+1}"); e(f"v_cvt_pk_bf16_f32 v{x + 2*jj + 1}, v{o+2}, v{o+3}")
        e("s_nop 1")
        e(f"v_permlane32_swap_b32 v{x}, v{x+2}"); e(f"v_permlane32_swap_b32 v{x+1}, v{x+3}")
        if p == 0 and m: e(f"s_add_u32 {sRow}, {sRow}, 8192")
        else: e("s_nop 0")
        e(f"v_permlane16_swap_b32 v{x}, v{x+2}"); e(f"v_permlane16_swap_b32 v{x+1}, v{x+3}")
        off = " offset:64" if p else ""
        a.vmem(f"buffer_store_dwordx4 {vr(x)}, v53, {sO}, {sRow} offen{off} {opol}", "out")
    if tl:
        stamp(False)
        e("s_waitcnt vmcnt(0)")
        stamp(False)
        e("s_lshl_b32 s38, s2, 2"); e("s_add_u32 s38, s38, s3"); e("s_lshl_b32 s38, s38, 6"); e("s_add_u32 s38, s38, 0x1010000")
        e("v_mov_b32 v8, s38")
        for k in tls:
            e(f"v_mov_b32 v4, s{64+2*k}")
            e(f"global_store_dword v8, v4, s[58:59] offset:{4*k}")
    if spin:
        e("s_waitcnt vmcnt(0)")
        a.label("L_spin")
        e("s_memrealtime s[44:45]"); e("s_waitcnt lgkmcnt(0)")
        e("s_sub_u32 s44, s44, s40"); e(f"s_cmp_lt_u32 s44, {spin*100}"); e("s_cbranch_scc1 L_spin")
    if stamps:
        e("s_waitcnt vmcnt(0)")
        e("s_memrealtime s[42:43]")
        e("s_lshl_b32 s38, s2, 2"); e("s_add_u32 s38, s38, s3"); e("s_lshl_b32 s38, s38, 4"); e("s_add_u32 s38, s38, 0x1000000")
        e("s_waitcnt lgkmcnt(0)")
        e("v_mov_b32 v4, s40"); e("v_mov_b32 v5, s41"); e("v_mov_b32 v6, s42"); e("v_mov_b32 v7, s43"); e("v_mov_b32 v8, s38")
        e("s_mov_b64 exec, 1")
        e("global_store_dwordx4 v8, v[4:7], s[58:59]")
    a.label("L_end")
    e("s_endpgm")
    return kernel_file(a.text(), notes=NOTES, sgpr=100 if tl else 64)

def emit(variants, tl_only=False):
    import hazard
    names = []
    for n, kw in variants.items():
        src = gen(**kw)
        L = src.split("\n")
        bad = hazard.check(L)
        for b in bad: print("HAZARD", n, b)
        k0 = next(i for i, x in enumerate(L) if "unit 0" in x); k1 = next(i for i, x in enumerate(L) if "row max over" in x)
        k2 = next(i for i, x in enumerate(L) if "unit 8" in x); k3 = next(i for i, x in enumerate(L) if "merge the quarter" in x)
        print(n, "est cycles: pro", hazard.estimate(L[:k0]), "ph1", hazard.estimate(L[k0:k1]), "bnd", hazard.estimate(L[k1:k2]),
              "ph2", hazard.estimate(L[k2:k3]), "tail", hazard.estimate(L[k3:]))
        if not tl_only:
            open(f"cdna_kernels/{n}.s", "w").write(src)
            build_co(gen(stamps=True, **kw), f"bench/{n}")
        build_co(gen(stamps=True, tl=True, **kw), f"bench/{n}_tl")
        names.append(n)
    print(" ".join(n + ".co" for n in names)); print(" ".join(n + "_tl.co" for n in names))
    print(str(["bench/host"] + [f"bench/{n}.co" for n in names if not tl_only] + [f"bench/{n}_tl.co" for n in names]).replace("'", '"'))
    print(str([f"cdna_kernels/{n}.s" for n in names]).replace("'", '"'))

if __name__ == "__main__":
    emit({"c2": {}, "c2_p46": dict(pro=(4, 6)), "c2_p24": dict(pro=(2, 4)), "c2_p34": dict(pro=(3, 4)), "c2_def": dict(pol="")})
```

```python
import sys, struct
from asmlib import *
import hazard

C_SCALE = 0.0625 * 1.4426950408889634
def f32bits(x): return struct.unpack("<I", struct.pack("<f", x))[0]

RING = 81920
SLOT = 8192
LAST = 255

NOTES = """; GQA attention. Workgroup = 96 query rows (one q head) x 512 keys, wave = 48 rows x 256 keys.
"""

VSEQ = [(3, 0), (2, 0), (3, 1), (2, 1), (3, 2), (3, 3), (2, 2), (2, 3)] + [(1, k) for k in range(4)] + [(0, k) for k in range(4)]

def gen(pol="nt", qpol="", opol="", W=7, LA=6, NS=6, T=4, pro=3, stamps=False, tl=False, tlb=False, clk=False, spin=0,
        xst="sc1", xld="sc1", n_flag=28, n_poll=240, n_chk=244, n_send=193, x_nodma=False):
    a = Asm(); e = a.e
    STAT = NS * SLOT
    assert STAT + 24576 + 1024 <= RING
    vKd = [1, 2, 3, 4]; vKr = [5, 6, 7, 8]; vVr = [9, 10, 11, 12]; vR = [13, 14, 15]; vM = [16, 17, 18]; vVd = 19
    vOnes = 20; vNon = 24; vDum = 25; vZero = 26; vLane16 = 27
    def RHO(kp, m): return 28 + kp * 3 + m
    vDbg, vSt, vSs, vWr, vSb, vQ16, vOut = 49, 50, 51, 52, 53, 54, 55
    def S(kt, m, r=0): return 64 + (kt * 3 + m) * 4 + r
    def Z(i): return S(2 * (i // 3) + 1, i % 3)
    def vr(b, n=4): return f"v[{b}:{b+n-1}]"
    def ar(b, n=4): return f"a[{b}:{b+n-1}]"
    def Q(m, s): return (m * 8 + s) * 4
    def O(x, jq, m): return ((4 * x + jq) * 3 + m) * 4
    def Lr(m): return 192 + 4 * m
    def F(n): return 204 + 4 * (n % W)
    sQ, sK, sV, sO, sW = "s[12:15]", "s[16:19]", "s[20:23]", "s[24:27]", "s[48:51]"
    sKb, sDst, sRing, sT, sC, sRow, sOwn = "s28", "s29", "s30", "s31", "s32", "s33", "s34"
    sMh, sKq, sGrp, sMem, sIn, sPin, sSib, sLow = "s35", "s46", "s47", "s52", "s53", "s54", "s55", "s44"
    sVb = ["s60", "s61", "s62", "s63"]
    sDbg = "s[56:57]"
    MF = "v_mfma_f32_16x16x32_bf16"
    tls = []
    def stamp(bar=False):
        if tl and bar == tlb:
            k = len(tls); tls.append(k)
            e(f"{'s_memtime' if clk else 's_memrealtime'} s[{64+2*k}:{65+2*k}]")

    e("s_cmp_ge_u32 s2, 256"); e("s_cbranch_scc1 L_end")
    e("s_memrealtime s[40:41]")
    if tl and clk: e("s_memtime s[64:65]")
    e("s_load_dwordx4 s[4:7], s[0:1], 0"); e("s_load_dwordx4 s[8:11], s[0:1], 16"); e("s_load_dwordx4 s[56:59], s[0:1], 32")
    a.c("pull the kernel's code into L2")
    e("s_getpc_b64 s[36:37]")
    e("v_lshlrev_b32 v28, 7, v0")
    e("v_min_u32 v28, L_end - L_pc, v28")
    a.label("L_pc")
    a.vmem(f"global_load_dword v{vDum}, v28, s[36:37]", "code")
    e("v_lshrrev_b32 v30, 6, v0"); e("v_and_b32 v0, 63, v0")
    e("v_readfirstlane_b32 s3, v30")
    a.c("workgroup -> (kv group, q head of the group, key half); ids equal mod 8 work on one group")
    e(f"s_and_b32 {sGrp}, s2, 7"); e("s_lshr_b32 s39, s2, 5"); e("s_lshl_b32 s39, s39, 3"); e(f"s_add_u32 {sGrp}, {sGrp}, s39")
    e(f"s_bfe_u32 {sMem}, s2, 0x20003")
    e(f"s_and_b32 s39, {sMem}, 1"); e(f"s_lshl_b32 s38, {sGrp}, 1"); e("s_add_u32 s38, s38, s39"); e(f"s_mul_i32 {sRow}, s38, {96*512}")
    e(f"s_lshr_b32 s45, {sMem}, 1"); e(f"s_lshl_b32 s43, {sGrp}, 19"); e("s_lshl_b32 s38, s45, 18"); e("s_add_u32 s43, s43, s38")
    e(f"s_and_b32 {sMh}, s3, 1"); e(f"s_lshr_b32 {sKq}, s3, 1")
    a.c("K unit u = 16 keys of the pair's key set: rows 8*mh.. of tile (u>>1)*64 + kq*32 + (u&1)*16")
    e(f"s_lshl_b32 s38, {sKq}, 14"); e("s_add_u32 s43, s43, s38"); e(f"s_lshl_b32 s38, {sMh}, 12"); e(f"s_add_u32 {sKb}, s43, s38")
    e(f"s_mul_i32 {sRing}, {sKq}, {RING}"); e(f"s_add_u32 {sDst}, {sRing}, s38")
    a.c("K / Q DMA source offsets")
    e("v_lshrrev_b32 v30, 5, v0"); e("v_and_b32 v31, 31, v0"); e("v_lshlrev_b32 v32, 1, v30"); e("v_xor_b32 v31, v31, v32")
    e("v_lshlrev_b32 v31, 4, v31"); e(f"v_lshl_add_u32 v{vKd[0]}, v30, 9, v31")
    for n in range(1, 4): e(f"v_xor_b32 v{vKd[n]}, {64*n}, v{vKd[0]}")
    e(f"s_lshl_b32 s38, {sMh}, 7")
    e(f"v_xor_b32 v33, s38, v{vKd[0]}"); e(f"v_xor_b32 v34, s38, v{vKd[1]}")
    e("s_lshl_b32 s39, s3, 11")
    e(f"s_add_u32 {sT}, {sRow}, s39")
    e("s_waitcnt lgkmcnt(0)")
    if tl:
        tls.append(0)
        if not clk: e("s_mov_b32 s64, s40")
    e("s_mov_b32 s12, s4"); e("s_mov_b32 s13, s5"); e("s_mov_b32 s14, 6291456"); e("s_mov_b32 s15, 0x20000")
    e("s_mov_b32 s16, s6"); e("s_mov_b32 s17, s7"); e("s_mov_b32 s18, 0x2000000"); e("s_mov_b32 s19, 0x20000")
    for t in range(6):
        e(f"s_add_u32 m0, s39, {(t // 3)*RING + STAT + (t % 3)*8192}")
        if t: e(f"s_add_u32 {sT}, {sT}, 8192")
        else: e("s_nop 0")
        a.vmem(f"buffer_load_dwordx4 v33, {sQ}, {sT} offen {qpol} lds", "Q")
        a.vmem(f"buffer_load_dwordx4 v34, {sQ}, {sT} offen offset:1024 {qpol} lds", "Q")

    def dma_list(u):
        slot = (u % NS) * SLOT
        out = []
        for n in range(4):
            off = f" offset:{1024*n}" if n else ""
            pre = [f"s_add_u32 m0, {sDst}, {slot}"] if n == 0 else []
            if u < 16:
                if n == 0: pre.append(f"s_add_u32 {sT}, {sKb}, {(u >> 1)*32768 + (u & 1)*8192}")
                ins = f"buffer_load_dwordx4 v{vKd[n]}, {sK}, {sT} offen{off} {pol} lds"
            else:
                x, kpp = VSEQ[u - 16]
                pre.append(f"s_add_u32 {sT}, {sVb[x]}, {kpp*65536 + n*3072}")
                ins = f"buffer_load_dwordx4 v{vVd}, {sV}, {sT} offen{off} {pol} lds"
            out.append([f"U{u}", pre, ins])
        return out
    def dma_emit(item):
        tag, pre, ins = item
        for p in pre: e(p)
        a.vmem(ins, tag)
    early = [it for u in range(T) for it in dma_list(u)]
    for it in early[:4*pro]: dma_emit(it)
    e("s_mov_b32 s20, s8"); e("s_mov_b32 s21, s9"); e("s_mov_b32 s22, 0x2000000"); e("s_mov_b32 s23, 0x20000")
    e("s_mov_b32 s24, s10"); e("s_mov_b32 s25, s11"); e("s_mov_b32 s26, 6291456"); e("s_mov_b32 s27, 0x20000")
    e("s_mov_b32 s48, s58"); e("s_mov_b32 s49, s59"); e("s_mov_b32 s50, 0x800000"); e("s_mov_b32 s51, 0x20000")
    e(f"s_mov_b32 {sC}, {hex(f32bits(C_SCALE))}"); e(f"s_mov_b32 {sLow}, 0xff7fffff")
    e(f"s_lshl_b32 {sOwn}, s45, 1"); e(f"s_add_u32 {sOwn}, {sOwn}, {sKq}"); e(f"s_lshl_b32 {sOwn}, {sOwn}, 7")
    e(f"s_lshl_b32 s38, {sMh}, 15"); e("s_add_u32 s43, s43, s38"); e(f"s_add_u32 {sVb[0]}, s43, {sOwn}")
    for x in range(1, 4): e(f"s_xor_b32 {sVb[x]}, {sVb[0]}, {128*x}")
    e("s_lshl_b32 s38, s2, 2"); e("s_add_u32 s38, s38, s3"); e(f"s_lshl_b32 {sIn}, s38, 13"); e(f"s_xor_b32 {sPin}, {sIn}, {64 << 13}")
    a.c("the group's first workgroup publishes the launch nonce")
    e(f"s_lshl_b32 s38, {sGrp}, 2"); e(f"v_mov_b32 v{vZero}, 0"); e(f"v_mov_b32 v{vDbg}, s38")
    e(f"s_or_b32 s38, {sMem}, s3"); e("s_cmp_eq_u32 s38, 0"); e("s_cbranch_scc0 L_nopub")
    e("s_or_b32 s38, s40, 1"); e("v_mov_b32 v46, s38")
    e(f"global_store_dword v{vDbg}, v46, {sDbg} sc1")
    a.label("L_nopub")
    a.c("K fragment read addresses (v35..v38: the same pattern for the Q tiles)")
    e("v_and_b32 v30, 15, v0"); e("v_lshrrev_b32 v31, 4, v0"); e("v_and_b32 v32, 7, v0"); e("v_lshlrev_b32 v32, 1, v32")
    e("v_xor_b32 v32, v32, v31"); e("v_lshlrev_b32 v32, 4, v32"); e("v_lshl_add_u32 v35, v30, 9, v32")
    for s in range(1, 4): e(f"v_xor_b32 v{35+s}, {64*s}, v35")
    e(f"s_mul_i32 s38, {sMh}, {RING}"); e(f"s_add_u32 s38, s38, {STAT}")
    for s in range(4):
        e(f"v_add_u32 v{vKr[s]}, {sRing}, v{35+s}")
        e(f"v_add_u32 v{35+s}, s38, v{35+s}")
    a.c("exchange-area and output addresses")
    e(f"v_lshlrev_b32 v{vQ16}, 4, v30"); e(f"v_lshlrev_b32 v{vLane16}, 4, v0")
    e(f"v_lshlrev_b32 v{vOut}, 4, v31"); e(f"v_lshl_add_u32 v{vOut}, v30, 9, v{vOut}")
    e(f"s_mul_i32 s38, {sMh}, 12288"); e(f"s_add_u32 s38, s38, {STAT}"); e(f"s_add_u32 s39, s38, {sRing}")
    e(f"v_add_u32 v{vWr}, s39, v{vLane16}")
    e(f"s_xor_b32 {sSib}, {sKq}, 1"); e(f"s_mul_i32 {sSib}, {sSib}, {RING}"); e(f"s_add_u32 s39, s38, {sSib}")
    e(f"v_add_u32 v{vSb}, s39, v{vLane16}")
    e(f"s_lshl_b32 s38, {sMh}, 9"); e(f"s_add_u32 s38, s38, {STAT + 24576}")
    e(f"s_add_u32 s39, s38, {sRing}"); e(f"v_add_u32 v{vSt}, s39, v{vQ16}")
    e(f"s_add_u32 s39, s38, {sSib}"); e(f"v_add_u32 v{vSs}, s39, v{vQ16}")
    a.c("V DMA source offset and transposed-read addresses (128-byte rows)")
    e("v_lshrrev_b32 v39, 3, v0"); e("v_and_b32 v40, 6, v39"); e("v_and_b32 v41, 7, v0"); e("v_xor_b32 v40, v40, v41")
    e("v_lshlrev_b32 v40, 4, v40"); e(f"v_lshl_add_u32 v{vVd}, v39, 9, v40")
    e("v_and_b32 v39, 3, v39"); e("v_lshlrev_b32 v39, 5, v39"); e("v_lshrrev_b32 v40, 2, v0"); e("v_and_b32 v41, 3, v0")
    e("v_lshlrev_b32 v41, 3, v41"); e("v_lshl_add_u32 v41, v40, 7, v41"); e(f"v_add_u32 v41, {sRing}, v41")
    for j in range(4):
        e(f"v_xor_b32 v40, {32*j}, v39"); e(f"v_add_u32 v{vVr[j]}, v40, v41")
    for i in range(4): e(f"v_mov_b32 v{vOnes+i}, 0x3f803f80")
    stamp()
    a.wait(vm="U0")
    e("s_barrier")
    stamp()
    pending = early[4*pro:] + dma_list(T)

    def vstep(n):
        u, s = n >> 3, n & 7
        x, kpp = VSEQ[u - 16]
        kl, jq = (s & 1, s >> 1) if u == 31 else (s >> 2, s & 3)
        return x, 2 * kpp + kl, kl, jq
    def rd_list(n):
        if n > LAST: return []
        u, s = n >> 3, n & 7
        slot = (u % NS) * SLOT
        if u < 16: return [(f"ds_read_b128 {ar(F(n))}, v{vKr[s & 3]} offset:{slot + 256*(s >> 2)}", f"F{n}")]
        x, kp, kl, jq = vstep(n)
        o = slot + 4096 * kl
        return [(f"ds_read_b64_tr_b16 {ar(F(n), 2)}, v{vVr[jq]} offset:{o}", f"F{n}"),
                (f"ds_read_b64_tr_b16 {ar(F(n)+2, 2)}, v{vVr[jq]} offset:{o + 2048}", f"F{n}")]
    def mfmas(n):
        out = []
        if n < 128:
            kt, ss = n >> 3, n & 7
            for m in range(3):
                d = vr(S(kt, m))
                out.append(f"{MF} {d}, {ar(F(n))}, {ar(Q(m, ss))}, {d if ss else 0}")
        else:
            x, kp, kl, jq = vstep(n)
            for m in range(3):
                d = ar(O(x, jq, m))
                out.append(f"{MF} {d}, {ar(F(n))}, {vr(S(2*kp, m))}, {d if kp else 0}")
            if x == 3 and jq < 3:
                d = ar(Lr(jq))
                out.append(f"{MF} {d}, {vr(vOnes)}, {vr(S(2*kp, jq))}, {d if kp else 0}")
        return out
    g0 = [0]
    for n in range(256): g0.append(g0[-1] + len(mfmas(n)))
    first_use = {}
    for n in range(128, 256): first_use.setdefault(vstep(n)[1], n)

    items = []
    def add(text, slots, deps, after, dl):
        items.append([text, slots, list(deps), after, dl]); return len(items) - 1
    def cvt_items(kp, m, src_ids):
        regs = [S(2*kp, m, r) for r in range(4)] + [S(2*kp+1, m, r) for r in range(4)]
        dl = g0[first_use[kp]] + m - 3
        prev = []
        for i in range(4):
            prev = [add(f"v_cvt_pk_bf16_f32 v{regs[i]}, v{regs[2*i]}, v{regs[2*i+1]}", 1, [src_ids[2*i], src_ids[2*i+1]] + prev, -1, dl)]
    last_r = [[], [], []]
    for kt in range(15):
        for m in range(3):
            aft = g0[8*kt + 7] + m
            dl = g0[8*kt + 16] - 1
            r0 = sLow if kt == 0 else f"v{vR[m]}"
            i0 = add(f"v_max3_f32 v{vR[m]}, {r0}, v{S(kt,m,0)}, v{S(kt,m,1)}", 1, last_r[m], aft, dl)
            i1 = add(f"v_max3_f32 v{vR[m]}, v{vR[m]}, v{S(kt,m,2)}, v{S(kt,m,3)}", 1, [i0], aft, dl)
            last_r[m] = [i1]
        if kt & 1:
            kp = kt >> 1
            dl = g0[16*kp + 32] - 1
            for m in range(3):
                ir = add(f"v_mul_f32_e64 v{RHO(kp,m)}, {sC}, v{vR[m]}", 1, last_r[m], -1, g0[8*kt + 16] - 1)
                last_r[m] = [ir]
                for x in [S(2*kp, m, r) for r in range(4)] + [S(2*kp+1, m, r) for r in range(4)]:
                    i0 = add(f"v_fma_f32 v{x}, v{x}, {sC}, -v{RHO(kp,m)}", 1, [ir], -1, dl)
                    add(f"v_exp_f32_e64 v{x}, v{x}", 2, [i0], -1, dl)
    n_phase1 = len(items)
    def phase2_items():
        for kp in range(1, 8):
            for m in range(3):
                dl = g0[first_use[kp]] + m - 3
                regs = [S(2*kp, m, r) for r in range(4)] + [S(2*kp+1, m, r) for r in range(4)]
                if kp < 7:
                    i0 = add(f"v_sub_f32_e64 v{RHO(kp,m)}, v{RHO(kp,m)}, v{vM[m]}", 1, [], -1, dl)
                    i1 = add(f"v_exp_f32_e64 v{RHO(kp,m)}, v{RHO(kp,m)}", 2, [i0], -1, dl)
                    ids = [add(f"v_mul_f32_e64 v{x}, v{x}, v{RHO(kp,m)}", 1, [i1], -1, dl) for x in regs]
                else:
                    ids = []
                    for x in regs:
                        i0 = add(f"v_fma_f32 v{x}, v{x}, {sC}, -v{vM[m]}", 1, [], -1, dl)
                        ids.append(add(f"v_exp_f32_e64 v{x}, v{x}", 2, [i0], -1, dl))
                cvt_items(kp, m, ids)
    left = list(range(n_phase1)); done = {}; mf_pos = {}
    def ninstr(): return sum(1 for x in a.lines if hazard.parse(x))
    cnt = [0, 0]
    def now():
        for x in a.lines[cnt[0]:]:
            p = hazard.parse(x)
            if p: cnt[1] += p["states"]
        cnt[0] = len(a.lines)
        return cnt[1]
    def ready(slots):
        t = now(); out = []
        for i in left:
            it = items[i]
            if it[1] != slots: continue
            if it[3] >= 0 and (it[3] not in mf_pos or t - mf_pos[it[3]] < 8): continue
            if all(d in done and (items[d][1] == 1 or t - done[d] >= 1) for d in it[2]): out.append(i)
        return out
    def take(slots):
        r = ready(slots)
        if not r: return False
        i = min(r, key=lambda k: (items[k][4], k))
        e(items[i][0]); done[i] = now(); left.remove(i); return True

    sync_step = {8*u - LA: u for u in range(1, 32)}
    ldsx = {}
    def put(n, op): ldsx.setdefault(n, []).append(op)
    def blk(jq, m): return (jq * 3 + m) * 1024
    cnts = [1, 1, 2, 2, 2, 2, 2, 1, 1, 1]
    for (x, n0, tag) in ((3, 175, "W3"), (1, 223, "W1")):
        ops = [(f"ds_write_b128 v{vWr}, {ar(O(x, jq, m))} offset:{blk(jq, m)}", tag) for jq in range(4) for m in range(3)]
        if x == 3: ops += [(f"ds_write_b32 v{vSt}, a{Lr(m)} offset:{256 + 4*m}", tag) for m in range(3)]
        for k, c in enumerate(cnts):
            for _ in range(c):
                if ops: put(n0 + k, ops.pop(0))
    msgs = [(m, p) for m in range(3) for p in range(2)]
    def B3(jq, m): return Z(jq * 3 + m)
    def B1(jq, m): return Z(12 + jq * 3 + m)
    k = 0
    for (m, p) in msgs:
        for jj in range(2):
            put(186 + k // 2, (f"ds_read_b128 {vr(B3(2*p+jj, m))}, v{vSb} offset:{blk(2*p+jj, m)}", "B3")); k += 1
    put(192, (f"ds_read_b96 v[36:38], v{vSs} offset:256", "B3"))
    k = 0
    for jq in range(4):
        for m in range(3):
            put(234 + k // 2, (f"ds_read_b128 {vr(B1(jq, m))}, v{vSb} offset:{blk(jq, m)}", "B1")); k += 1
    vmx = {100: (f"global_load_dword v{vNon}, v{vDbg}, {sDbg} sc1", "nonce"),
           102: (f"buffer_load_dword v{vDum}, v{vZero}, {sW}, {sIn} offen sc1", "pre"),
           104: (f"buffer_load_dword v{vDum}, v{vZero}, {sW}, {sPin} offen sc1", "pre"),
           106: (f"buffer_load_dword v{vDum}, v{vZero}, {sO}, {sRow} offen sc1", "pre")}
    def fixed(n):
        u_next = ((n + LA) >> 3) + T
        dma = 2 if (n & 1 and u_next < 32 and not x_nodma) or n in vmx else 0
        return len(rd_list(n + LA)) + len(ldsx.get(n, [])) + dma + (1 if n in sync_step else 0)
    def overdue(n, gi):
        g = g0[n] + gi
        rel = {}
        for i in left:
            rel[i] = (items[i][3] < 0 or items[i][3] in mf_pos) and all(d in done or rel[d] for d in items[i][2])
        dls = sorted({items[i][4] for i in left if rel[i]})
        for D in dls:
            dem = sum(items[i][1] for i in left if items[i][4] <= D)
            sup = 2 * max(0, D - g)
            k = n + 1
            while k < 256 and g0[k] <= D: sup -= fixed(k); k += 1
            if dem > sup: return True
        return False
    def unit_sync(u):
        assert all(it[0] != f"U{u}" for it in pending)
        if x_nodma and u > T: pass
        else: a.wait(vm=[f"U{u}"] + (["send"] if u == n_flag else []), lg={24: "W3", 30: "W1"}.get(u))
        if x_nodma and u in (24, 30): a.wait(lg={24: "W3", 30: "W1"}[u])
        if x_nodma and u == n_flag: a.wait(vm="send")
        e("s_barrier")
        if u & 1 and u > 1: stamp(bar=True)
        if u + T < 32 and not x_nodma: pending.extend(dma_list(u + T))
    def step(n, extra=()):
        extra = list(extra)
        rds = rd_list(n + LA); lx = list(ldsx.get(n, []))
        mf = mfmas(n); k = len(mf)
        lft = (7 - ((n + LA) & 7)) // 2 + 1
        due = bool(pending) and bool(n & 1 or len(pending) > lft)
        both = len(rds) == 2 and (due or n in vmx or len(ready(2)) >= 2 or not ready(1))
        for gi, ins in enumerate(mf):
            e(ins); mf_pos[g0[n] + gi] = now()
            used = 0; nfree = 0
            if gi == k - 1 and n < LAST:
                a.wait(lg=f"F{n+1}"); nfree += 1
            if gi == 0 and n in sync_step:
                unit_sync(sync_step[n]); nfree += 2
            if gi < 2 and pending and pending[0][1] and (gi == 0 or not due):
                pre = pending[0][1]
                c = len(pre) if due else 1
                for p in pre[:c]: e(p); nfree += 1
                del pre[:c]
            used += max(0, nfree - 1)
            if gi == 0 and rds:
                for x in (rds if both else rds[:1]): a.lds(*x); used += 1
            if gi == 1 and len(rds) == 2 and not both:
                a.lds(*rds[1]); used += 1
            if lx and gi >= 1:
                a.lds(*lx.pop(0)); used += 1
            if gi == 1 and due and pending and not pending[0][1]:
                dma_emit(pending.pop(0)); used += 2
            elif gi == 1 and n in vmx:
                a.vmem(*vmx[n]); used += 2
            while extra and (used < 2 or gi == k - 1):
                e(extra.pop(0)); used += 1
            while used < 2 and left:
                if used == 0 and take(2): used += 2
                elif take(1): used += 1
                else: break
            while left and overdue(n, gi):
                if not (take(1) or take(2)): break
            assert not any(items[i][4] <= g0[n] + gi for i in left), (n, gi, [items[i] for i in left if items[i][4] <= g0[n] + gi][:3])
        assert not lx

    for s in range(8):
        for m in range(3):
            a.lds(f"ds_read_b128 {ar(Q(m, s))}, v{35 + (s & 3)} offset:{m*8192 + 256*(s >> 2)}", "Qf")
        if s < LA: a.lds(*rd_list(s)[0])
        if pending and s & 1: dma_emit(pending.pop(0))
    a.wait(lg="all")
    stamp()
    for n in range(128):
        if n % 8 == 0: a.c(f"unit {n >> 3}")
        step(n)
    assert not left
    a.c("row max over the workgroup's keys (sibling wave via LDS); first P tile")
    stamp()
    e("s_nop 6")
    for m in range(3):
        e(f"v_max3_f32 v{vR[m]}, v{vR[m]}, v{S(15,m,0)}, v{S(15,m,1)}"); e(f"v_max3_f32 v{vR[m]}, v{vR[m]}, v{S(15,m,2)}, v{S(15,m,3)}")
    for m in range(3): e(f"v_mov_b32 v{56+m}, v{vR[m]}")
    e("s_nop 0")
    for m in range(3): e(f"v_permlane32_swap_b32 v{56+m}, v{vR[m]}")
    for m in range(3): e(f"v_max_f32 v{vR[m]}, v{vR[m]}, v{56+m}")
    for m in range(3): e(f"v_mov_b32 v{56+m}, v{vR[m]}")
    e("s_nop 0")
    for m in range(3): e(f"v_permlane16_swap_b32 v{56+m}, v{vR[m]}")
    for m in range(3): e(f"v_max_f32 v{56+m}, v{vR[m]}, v{56+m}")
    a.lds(f"ds_write_b96 v{vSt}, v[56:58]", "Mx")
    a.wait(lg="Mx")
    e("s_barrier")
    a.lds(f"ds_read_b96 v[60:62], v{vSs}", "Mr")
    a.wait(lg="Mr")
    for m in range(3): e(f"v_max_f32 v{vM[m]}, v{56+m}, v{60+m}")
    for m in range(3): e(f"v_mul_f32 v{vM[m]}, {sC}, v{vM[m]}")
    for m in range(3): e(f"v_sub_f32 v{56+2*m}, v{RHO(0,m)}, v{vM[m]}")
    for m in range(3): e(f"v_exp_f32 v{56+2*m}, v{56+2*m}")
    for m in range(3):
        for t in range(2):
            for h in (0, 2):
                e(f"v_pk_mul_f32 {vr(S(t,m,h), 2)}, {vr(S(t,m,h), 2)}, {vr(56+2*m, 2)} op_sel_hi:[1,0]")
        regs = [S(0, m, r) for r in range(4)] + [S(1, m, r) for r in range(4)]
        for i in range(4): e(f"v_cvt_pk_bf16_f32 v{regs[i]}, v{regs[2*i]}, v{regs[2*i+1]}")
    phase2_items(); left.extend(range(n_phase1, len(items)))

    def A2(jq, m): return Z(12 + jq * 3 + m)
    def PK(i): return B3(2 * msgs[i][1], msgs[i][0])
    def RC(i): return B3(2 * msgs[i][1] + 1, msgs[i][0])
    def send():
        a.c("merge the partner's quarter with the sibling wave's part and send it")
        stamp()
        for i, (m, p) in enumerate(msgs):
            for jj in range(2):
                for r in range(4): e(f"v_accvgpr_read_b32 v{A2(2*p+jj, m) + r}, a{O(2, 2*p+jj, m) + r}")
            if i == 0: a.wait(lg="B3")
            for jj in range(2):
                for h in (0, 2): e(f"v_pk_add_f32 {vr(A2(2*p+jj, m)+h, 2)}, {vr(A2(2*p+jj, m)+h, 2)}, {vr(B3(2*p+jj, m)+h, 2)}")
            for jj in range(2):
                for h in range(2): e(f"v_cvt_pk_bf16_f32 v{PK(i) + 2*jj + h}, v{A2(2*p+jj, m)+2*h}, v{A2(2*p+jj, m)+2*h+1}")
            if i == 0: e(f"s_add_u32 s45, {sPin}, 4096")
            a.vmem(f"buffer_store_dwordx4 {vr(PK(i))}, v{vLane16}, {sW}, {sPin if i < 4 else 's45'} offen offset:{1024*(i & 3)} {xst}", "send")
        for m in range(3): e(f"v_accvgpr_read_b32 v{32+m}, a{Lr(m)}")
        for m in range(3): e(f"v_mov_b32 v{28+m}, v{vM[m]}")
        for m in range(3): e(f"v_add_f32 v{32+m}, v{32+m}, v{36+m}")
        e("s_mov_b64 exec, 0xffff")
        a.vmem(f"buffer_store_dwordx3 v[28:30], v{vQ16}, {sW}, s45 offen offset:2048 {xst}", "send")
        a.vmem(f"buffer_store_dwordx3 v[32:34], v{vQ16}, {sW}, s45 offen offset:2304 {xst}", "send")
        e("s_mov_b64 exec, -1")
        e(f"v_readfirstlane_b32 s42, v{vNon}")
        e(f"s_add_u32 s43, {sIn}, 4096")
        e("s_cmp_eq_u32 s42, 0"); e("s_cbranch_scc1 L_nonce")
        a.label("L_havenonce")
        stamp()
    def flag():
        e("s_mov_b64 exec, 1")
        a.vmem(f"buffer_store_dword v{vNon}, v{vZero}, {sW}, s45 offen offset:3072 sc1", "flag")
        e("s_mov_b64 exec, -1")
    def poll():
        a.vmem(f"buffer_load_dword v{vDum}, v{vZero}, {sW}, s43 offen offset:3072 sc1", "poll")
    def check():
        a.wait(vm="poll")
        stamp()
        e(f"v_readfirstlane_b32 s38, v{vDum}")
        e("s_cmp_lg_u32 s38, s42"); e("s_cbranch_scc1 L_poll")
        a.label("L_got")
        stamp()
        a.vmem(f"buffer_load_dwordx3 v[40:42], v{vQ16}, {sW}, s43 offen offset:2048 {xld}", "rs")
        a.vmem(f"buffer_load_dwordx3 v[44:46], v{vQ16}, {sW}, s43 offen offset:2304 {xld}", "rs")
        for i in range(6):
            a.vmem(f"buffer_load_dwordx4 {vr(RC(i))}, v{vLane16}, {sW}, {sIn if i < 4 else 's43'} offen offset:{1024*(i & 3)} {xld}", f"rc{i}")
    def own_ops(jq):
        out = []
        for m in range(3):
            t = PK(2 * ((jq * 3 + m) % 3))
            out += [f"v_accvgpr_read_b32 v{t + r}, a{O(0, jq, m) + r}" for r in range(4)]
            out += [f"v_add_f32 v{B1(jq, m) + r}, v{B1(jq, m) + r}, v{t + r}" for r in range(4)]
        return out
    for n in range(128, 256):
        if n % 8 == 0: a.c(f"unit {n >> 3}")
        extra = []
        if n == 250: a.wait(lg="B1")
        if n == 253: extra = own_ops(0)[:8]
        if n == 254: extra = own_ops(0)[8:16]
        if n == 255: extra = own_ops(0)[16:]
        step(n, extra)
        if n == n_send: send()
        if n == 8 * n_flag - LA: flag()
        if n == n_poll: poll()
        if n == n_chk: check()
    assert not left and not pending
    a.c("final combine")
    stamp()
    e(f"s_mul_i32 s38, {sMh}, {48*512}"); e(f"s_add_u32 {sRow}, {sRow}, s38"); e(f"s_add_u32 {sRow}, {sRow}, {sOwn}")
    for jq in range(1, 4):
        for m in range(3):
            t = PK(2 * m)
            for r in range(4): e(f"v_accvgpr_read_b32 v{t + r}, a{O(0, jq, m) + r}")
            for h in (0, 2): e(f"v_pk_add_f32 {vr(B1(jq, m)+h, 2)}, {vr(B1(jq, m)+h, 2)}, {vr(t+h, 2)}")
    a.wait(vm="rs")
    stamp()
    fa = [56, 58, 60]; fb = [57, 59, 61]; tt = [62, 63, 48]
    for m in range(3): e(f"v_max_f32 v{tt[m]}, v{28+m}, v{40+m}")
    for m in range(3):
        e(f"v_sub_f32 v{fa[m]}, v{28+m}, v{tt[m]}"); e(f"v_sub_f32 v{fb[m]}, v{40+m}, v{tt[m]}")
    for m in range(3):
        e(f"v_exp_f32 v{fa[m]}, v{fa[m]}"); e(f"v_exp_f32 v{fb[m]}, v{fb[m]}")
    for m in range(3): e(f"v_mul_f32 v{tt[m]}, v{fa[m]}, v{32+m}")
    for m in range(3): e(f"v_fmac_f32 v{tt[m]}, v{fb[m]}, v{44+m}")
    for m in range(3): e(f"v_rcp_f32 v{tt[m]}, v{tt[m]}")
    e("s_mov_b32 s38, 0xffff0000")
    for m in range(3):
        e(f"v_mul_f32 v{fa[m]}, v{fa[m]}, v{tt[m]}"); e(f"v_mul_f32 v{fb[m]}, v{fb[m]}, v{tt[m]}")
    for i, (m, p) in enumerate(msgs):
        for jj in range(2):
            o = B1(2*p + jj, m)
            for h in (0, 2): e(f"v_pk_mul_f32 {vr(o+h, 2)}, {vr(o+h, 2)}, {vr(fa[m], 2)} op_sel_hi:[1,0]")
        a.wait(vm=f"rc{i}")
        for jj in range(2):
            u0 = PK(2 * jj)
            for d in range(2):
                e(f"v_lshlrev_b32 v{u0 + 2*d}, 16, v{RC(i) + 2*jj + d}"); e(f"v_and_b32 v{u0 + 2*d + 1}, s38, v{RC(i) + 2*jj + d}")
        for jj in range(2):
            o = B1(2*p + jj, m); u0 = PK(2 * jj)
            for h in (0, 2):
                e(f"v_pk_fma_f32 {vr(o + h, 2)}, {vr(u0 + h, 2)}, {vr(fa[m], 2)}, {vr(o + h, 2)} op_sel:[0,1,0] op_sel_hi:[1,1,1]")
        x = RC(i)
        for jj in range(2):
            o = B1(2*p + jj, m)
            e(f"v_cvt_pk_bf16_f32 v{x + 2*jj}, v{o}, v{o+1}"); e(f"v_cvt_pk_bf16_f32 v{x + 2*jj + 1}, v{o+2}, v{o+3}")
        e("s_nop 1")
        e(f"v_permlane32_swap_b32 v{x}, v{x+2}"); e(f"v_permlane32_swap_b32 v{x+1}, v{x+3}")
        if p == 0 and m: e(f"s_add_u32 {sRow}, {sRow}, 8192")
        else: e("s_nop 0")
        e(f"v_permlane16_swap_b32 v{x}, v{x+2}"); e(f"v_permlane16_swap_b32 v{x+1}, v{x+3}")
        off = " offset:64" if p else ""
        a.vmem(f"buffer_store_dwordx4 {vr(x)}, v{vOut}, {sO}, {sRow} offen{off} {opol}", "out")
    if tl:
        stamp()
        e("s_waitcnt vmcnt(0)")
        stamp(); stamp(bar=True)
        e("s_waitcnt lgkmcnt(0)")
        e("s_lshl_b32 s38, s2, 2"); e("s_add_u32 s38, s38, s3"); e("s_lshl_b32 s38, s38, 6"); e("s_add_u32 s38, s38, 0x1010000")
        e("v_mov_b32 v8, s38")
        for k in tls[:16]:
            e(f"v_mov_b32 v4, s{64+2*k}")
            e(f"global_store_dword v8, v4, s[58:59] offset:{4*k}")
    if spin:
        e("s_waitcnt vmcnt(0)")
        a.label("L_spin")
        e("s_memrealtime s[44:45]"); e("s_waitcnt lgkmcnt(0)")
        e("s_sub_u32 s44, s44, s40"); e(f"s_cmp_lt_u32 s44, {spin*100}"); e("s_cbranch_scc1 L_spin")
    if stamps:
        e("s_waitcnt vmcnt(0)")
        e("s_memrealtime s[42:43]")
        e("s_lshl_b32 s38, s2, 2"); e("s_add_u32 s38, s38, s3"); e("s_lshl_b32 s38, s38, 4"); e("s_add_u32 s38, s38, 0x1000000")
        e("s_waitcnt lgkmcnt(0)")
        e("v_mov_b32 v4, s40"); e("v_mov_b32 v5, s41"); e("v_mov_b32 v6, s42"); e("v_mov_b32 v7, s43"); e("v_mov_b32 v8, s38")
        e("s_mov_b64 exec, 1")
        e("global_store_dwordx4 v8, v[4:7], s[58:59]")
    e("s_endpgm")
    a.c("slow paths: the nonce or the partner's flag was not there yet")
    a.label("L_nonce")
    e("s_mov_b32 s39, 0x100000")
    a.label("L_nonce2")
    e(f"global_load_dword v{vNon}, v{vDbg}, {sDbg} sc1")
    e("s_sub_u32 s39, s39, 1"); e("s_cmp_eq_u32 s39, 0"); e("s_cbranch_scc1 L_havenonce")
    e("s_waitcnt vmcnt(0)")
    e(f"v_readfirstlane_b32 s42, v{vNon}")
    e("s_cmp_eq_u32 s42, 0"); e("s_cbranch_scc1 L_nonce2")
    e("s_branch L_havenonce")
    a.label("L_poll")
    e("s_mov_b32 s39, 0x100000")
    a.label("L_poll2")
    e(f"buffer_load_dword v{vDum}, v{vZero}, {sW}, s43 offen offset:3072 sc1")
    e("s_sub_u32 s39, s39, 1"); e("s_cmp_eq_u32 s39, 0"); e("s_cbranch_scc1 L_got")
    e("s_waitcnt vmcnt(0)")
    e(f"v_readfirstlane_b32 s38, v{vDum}")
    e("s_cmp_lg_u32 s38, s42"); e("s_cbranch_scc1 L_poll2")
    e("s_branch L_got")
    a.label("L_end")
    e("s_endpgm")
    return kernel_file(a.text(), notes=NOTES, sgpr=100 if tl else 64)

def emit(variants, tl_only=False):
    names = []
    for n, kw in variants.items():
        src = gen(**kw)
        L = src.split("\n")
        for b in hazard.check(L): print("HAZARD", n, b)
        ks = [next(i for i, x in enumerate(L) if key in x) for key in ("; unit 0", "row max over", "; unit 16", "merge the partner", "final combine", "slow paths")]
        print(n, "est cycles: pro", hazard.estimate(L[:ks[0]]), "ph1", hazard.estimate(L[ks[0]:ks[1]]), "bnd", hazard.estimate(L[ks[1]:ks[2]]),
              "2a", hazard.estimate(L[ks[2]:ks[3]]), "2b", hazard.estimate(L[ks[3]:ks[4]]), "tail", hazard.estimate(L[ks[4]:ks[5]]))
        if not tl_only:
            open(f"cdna_kernels/{n}.s", "w").write(src)
            build_co(gen(stamps=True, **kw), f"bench/{n}")
        build_co(gen(stamps=True, tl=True, **kw), f"bench/{n}_tl")
        build_co(gen(stamps=True, tl=True, tlb=True, **kw), f"bench/{n}_tb")
        names.append(n)
    for sfx in ("", "_tl", "_tb"): print(" ".join(n + sfx + ".co" for n in names))
    print(str(["bench/host"] + [f"bench/{n}{sfx}.co" for n in names for sfx in (("_tl", "_tb") if tl_only else ("", "_tl", "_tb"))]).replace("'", '"'))
    print(str([f"cdna_kernels/{n}.s" for n in names]).replace("'", '"'))

if __name__ == "__main__":
    emit({"d1": {}, "d1_p2": dict(pro=2), "d1_p4": dict(pro=4)})
```

```python
import sys, struct
from asmlib import *
import hazard

C_SCALE = 0.0625 * 1.4426950408889634
def f32bits(x): return struct.unpack("<I", struct.pack("<f", x))[0]

RING = 81920
SLOT = 8192
LAST = 255
WSTAT = 0x800000

NOTES = """; GQA attention. Workgroup = 96 query rows (one q head) x 512 keys, wave = 48 rows x 256 keys.
; 16-byte granules, each tagged with a per-launch nonce that is published in d_debug.
"""

VSEQ = [(3, 0), (2, 0), (3, 1), (2, 1), (3, 2), (3, 3), (2, 2), (2, 3)] + [(1, k) for k in range(4)] + [(0, k) for k in range(4)]

def gen(pol="nt", qpol="", opol="", W=7, LA=6, LA2=2, NS=6, T=4, pro=3, stamps=False, tl=False, tlb=False, clk=False, spin=0,
        xst="sc1", xld="sc1", send_dl=204, n_recv=236, n_chk=247, swaps=True, x_nodma=False, bsh=(10, 12)):
    a = Asm(); e = a.e
    STAT = NS * SLOT
    assert STAT + 24576 + 1024 <= RING
    vKd = [1, 2, 3, 4]; vKr = [5, 6, 7, 8]; vVr = [9, 10, 11, 12]; vR = [13, 14, 15]; vM = [16, 17, 18]; vVd = 19
    vOnes = 20; vNon = 24; vDum = 25; vZero = 26; vLane16 = 27
    def RHO(kp, m): return 28 + kp * 3 + m
    vDbg, vSt, vSs, vWr, vSb, vQ16, vOut = 52, 53, 54, 55, 56, 57, 58
    def S(kt, m, r=0): return 64 + (kt * 3 + m) * 4 + r
    def Z(i): return S(2 * (i // 3) + 1, i % 3)
    def vr(b, n=4): return f"v[{b}:{b+n-1}]"
    def ar(b, n=4): return f"a[{b}:{b+n-1}]"
    def pair(r): return (vr(r & ~1, 2), r & 1)
    def Q(m, s): return (m * 8 + s) * 4
    def OA(x, jq, m): return ((4 * (x >> 1) + jq) * 3 + m) * 4
    def OV(jq, m): return Z(jq * 3 + m)
    def B3(jq, m): return Z(12 + jq * 3 + m)
    def B1(jq, m): return S(2 * jq, m)
    msgs = [(m, p) for m in range(3) for p in range(2)]
    dead = [B3(2 * p + jj, m) for (m, p) in msgs for jj in range(2)]
    def G(g): return dead[g]
    def Lr(m): return 192 + 4 * m
    def F(n): return 204 + 4 * (n % W)
    sQ, sK, sV, sO, sW = "s[12:15]", "s[16:19]", "s[20:23]", "s[24:27]", "s[48:51]"
    sKb, sDst, sRing, sT, sC, sRow, sOwn = "s28", "s29", "s30", "s31", "s32", "s33", "s34"
    sMh, sKq, sGrp, sMem, sIn, sPin, sSib, sLow = "s35", "s46", "s47", "s52", "s53", "s54", "s55", "s44"
    sVb = ["s60", "s61", "s62", "s63"]
    sIn2, sPin2, sInS, sPinS, sHi = "s4", "s5", "s6", "s7", "s8"
    sDbg = "s[56:57]"
    MF = "v_mfma_f32_16x16x32_bf16"
    tls = []
    def stamp(bar=False):
        if tl and bar == tlb:
            k = len(tls); tls.append(k)
            e(f"{'s_memtime' if clk else 's_memrealtime'} s[{64+2*k}:{65+2*k}]")

    e("s_cmp_ge_u32 s2, 256"); e("s_cbranch_scc1 L_end")
    e("s_memrealtime s[40:41]")
    if tl and clk: e("s_memtime s[64:65]")
    e("s_load_dwordx4 s[4:7], s[0:1], 0"); e("s_load_dwordx4 s[8:11], s[0:1], 16"); e("s_load_dwordx4 s[56:59], s[0:1], 32")
    a.c("pull the kernel's code into L2")
    e("s_getpc_b64 s[36:37]")
    e("v_lshlrev_b32 v28, 7, v0")
    e("v_min_u32 v28, L_end - L_pc, v28")
    a.label("L_pc")
    a.vmem(f"global_load_dword v{vDum}, v28, s[36:37]", "code")
    e("v_lshrrev_b32 v30, 6, v0"); e("v_and_b32 v0, 63, v0")
    e("v_readfirstlane_b32 s3, v30")
    a.c("workgroup -> (kv group, q head of the group, key half); ids equal mod 8 work on one group")
    e(f"s_and_b32 {sGrp}, s2, 7"); e("s_lshr_b32 s39, s2, 5"); e("s_lshl_b32 s39, s39, 3"); e(f"s_add_u32 {sGrp}, {sGrp}, s39")
    e(f"s_bfe_u32 {sMem}, s2, 0x20003")
    e(f"s_and_b32 s39, {sMem}, 1"); e(f"s_lshl_b32 s38, {sGrp}, 1"); e("s_add_u32 s38, s38, s39"); e(f"s_mul_i32 {sRow}, s38, {96*512}")
    e(f"s_lshr_b32 s45, {sMem}, 1"); e(f"s_lshl_b32 s43, {sGrp}, 19"); e("s_lshl_b32 s38, s45, 18"); e("s_add_u32 s43, s43, s38")
    e(f"s_and_b32 {sMh}, s3, 1"); e(f"s_lshr_b32 {sKq}, s3, 1")
    a.c("K unit u of ring kq = 16-key tile 2u+kq of the key half; wave mh loads rows 8*mh..")
    e(f"s_lshl_b32 s38, {sKq}, 13"); e("s_add_u32 s43, s43, s38"); e(f"s_lshl_b32 s38, {sMh}, 12"); e(f"s_add_u32 {sKb}, s43, s38")
    e(f"s_mul_i32 {sRing}, {sKq}, {RING}"); e(f"s_add_u32 {sDst}, {sRing}, s38")
    a.c("K / Q DMA source offsets")
    e("v_lshrrev_b32 v30, 5, v0"); e("v_and_b32 v31, 31, v0"); e("v_lshlrev_b32 v32, 1, v30"); e("v_xor_b32 v31, v31, v32")
    e("v_lshlrev_b32 v31, 4, v31"); e(f"v_lshl_add_u32 v{vKd[0]}, v30, 9, v31")
    for n in range(1, 4): e(f"v_xor_b32 v{vKd[n]}, {64*n}, v{vKd[0]}")
    e(f"s_lshl_b32 s38, {sMh}, 7")
    e(f"v_xor_b32 v33, s38, v{vKd[0]}"); e(f"v_xor_b32 v34, s38, v{vKd[1]}")
    e("s_lshl_b32 s39, s3, 11")
    e(f"s_add_u32 {sT}, {sRow}, s39")
    e("s_waitcnt lgkmcnt(0)")
    if tl:
        tls.append(0)
        if not clk: e("s_mov_b32 s64, s40")
    e("s_mov_b32 s12, s4"); e("s_mov_b32 s13, s5"); e("s_mov_b32 s14, 6291456"); e("s_mov_b32 s15, 0x20000")
    e("s_mov_b32 s16, s6"); e("s_mov_b32 s17, s7"); e("s_mov_b32 s18, 0x2000000"); e("s_mov_b32 s19, 0x20000")
    for t in range(6):
        e(f"s_add_u32 m0, s39, {(t // 3)*RING + STAT + (t % 3)*8192}")
        if t: e(f"s_add_u32 {sT}, {sT}, 8192")
        else: e("s_nop 0")
        a.vmem(f"buffer_load_dwordx4 v33, {sQ}, {sT} offen {qpol} lds", "Q")
        a.vmem(f"buffer_load_dwordx4 v34, {sQ}, {sT} offen offset:1024 {qpol} lds", "Q")

    def dma_list(u):
        slot = (u % NS) * SLOT
        out = []
        for n in range(4):
            off = f" offset:{1024*n}" if n else ""
            pre = [f"s_add_u32 m0, {sDst}, {slot}"] if n == 0 else []
            if u < 16:
                if n == 0: pre.append(f"s_add_u32 {sT}, {sKb}, {u*16384}")
                ins = f"buffer_load_dwordx4 v{vKd[n]}, {sK}, {sT} offen{off} {pol} lds"
            else:
                x, kpp = VSEQ[u - 16]
                pre.append(f"s_add_u32 {sT}, {sVb[x]}, {kpp*65536 + (0, 3072, 14336, 17408)[n]}")
                ins = f"buffer_load_dwordx4 v{vVd}, {sV}, {sT} offen{off} {pol} lds"
            out.append([f"U{u}", pre, ins])
        return out
    def dma_emit(item):
        tag, pre, ins = item
        for p in pre: e(p)
        a.vmem(ins, tag)
    early = [it for u in range(T) for it in dma_list(u)]
    for it in early[:4*pro]: dma_emit(it)
    e("s_mov_b32 s20, s8"); e("s_mov_b32 s21, s9"); e("s_mov_b32 s22, 0x2000000"); e("s_mov_b32 s23, 0x20000")
    e("s_mov_b32 s24, s10"); e("s_mov_b32 s25, s11"); e("s_mov_b32 s26, 6291456"); e("s_mov_b32 s27, 0x20000")
    e("s_mov_b32 s48, s58"); e("s_mov_b32 s49, s59"); e(f"s_mov_b32 s50, {WSTAT + 1024*512}"); e("s_mov_b32 s51, 0x20000")
    e(f"s_mov_b32 {sC}, {hex(f32bits(C_SCALE))}"); e(f"s_mov_b32 {sLow}, 0xff7fffff"); e(f"s_mov_b32 {sHi}, 0xffff0000")
    e(f"s_lshl_b32 {sOwn}, s45, 1"); e(f"s_add_u32 {sOwn}, {sOwn}, {sKq}"); e(f"s_lshl_b32 {sOwn}, {sOwn}, 7")
    e(f"s_lshl_b32 s38, {sMh}, 15"); e("s_add_u32 s43, s43, s38"); e(f"s_add_u32 {sVb[0]}, s43, {sOwn}")
    for x in range(1, 4): e(f"s_xor_b32 {sVb[x]}, {sVb[0]}, {128*x}")
    e("s_lshl_b32 s38, s2, 2"); e("s_add_u32 s38, s38, s3"); e(f"s_lshl_b32 {sIn}, s38, 13"); e(f"s_xor_b32 {sPin}, {sIn}, {64 << 13}")
    e(f"s_add_u32 {sIn2}, {sIn}, 4096"); e(f"s_add_u32 {sPin2}, {sPin}, 4096")
    e("s_lshl_b32 s38, s38, 9"); e(f"s_add_u32 {sInS}, s38, {WSTAT}"); e(f"s_xor_b32 {sPinS}, {sInS}, {64 << 9}")
    a.c("the group's first workgroup publishes the launch nonce")
    e(f"s_lshl_b32 s38, {sGrp}, 2"); e(f"v_mov_b32 v{vZero}, 0"); e(f"v_mov_b32 v{vDbg}, s38")
    e(f"s_or_b32 s38, {sMem}, s3"); e("s_cmp_eq_u32 s38, 0"); e("s_cbranch_scc0 L_nopub")
    e("s_or_b32 s38, s40, 1"); e("v_mov_b32 v46, s38")
    e(f"global_store_dword v{vDbg}, v46, {sDbg} sc1")
    a.label("L_nopub")
    a.c("K fragment read addresses (v35..v38: the same pattern for the Q tiles)")
    e("v_and_b32 v30, 15, v0"); e("v_lshrrev_b32 v31, 4, v0"); e("v_and_b32 v32, 7, v0"); e("v_lshlrev_b32 v32, 1, v32")
    e("v_xor_b32 v32, v32, v31"); e("v_lshlrev_b32 v32, 4, v32"); e("v_lshl_add_u32 v35, v30, 9, v32")
    for s in range(1, 4): e(f"v_xor_b32 v{35+s}, {64*s}, v35")
    e(f"s_mul_i32 s38, {sMh}, {RING}"); e(f"s_add_u32 s38, s38, {STAT}")
    for s in range(4):
        e(f"v_add_u32 v{vKr[s]}, {sRing}, v{35+s}")
        e(f"v_add_u32 v{35+s}, s38, v{35+s}")
    a.c("exchange-area and output addresses")
    e(f"v_lshlrev_b32 v{vQ16}, 4, v30"); e(f"v_lshlrev_b32 v{vLane16}, 4, v0")
    e(f"v_lshlrev_b32 v{vOut}, {4 if swaps else 3}, v31"); e(f"v_lshl_add_u32 v{vOut}, v30, 9, v{vOut}")
    e(f"s_mul_i32 s38, {sMh}, 12288"); e(f"s_add_u32 s38, s38, {STAT}"); e(f"s_add_u32 s39, s38, {sRing}")
    e(f"v_add_u32 v{vWr}, s39, v{vLane16}")
    e(f"s_xor_b32 {sSib}, {sKq}, 1"); e(f"s_mul_i32 {sSib}, {sSib}, {RING}"); e(f"s_add_u32 s39, s38, {sSib}")
    e(f"v_add_u32 v{vSb}, s39, v{vLane16}")
    e(f"s_lshl_b32 s38, {sMh}, 9"); e(f"s_add_u32 s38, s38, {STAT + 24576}")
    e(f"s_add_u32 s39, s38, {sRing}"); e(f"v_add_u32 v{vSt}, s39, v{vQ16}")
    e(f"s_add_u32 s39, s38, {sSib}"); e(f"v_add_u32 v{vSs}, s39, v{vQ16}")
    a.c("V DMA source offset and transposed-read addresses (128-byte rows)")
    e("v_lshrrev_b32 v39, 3, v0"); e("v_and_b32 v40, 6, v39"); e("v_and_b32 v41, 7, v0"); e("v_xor_b32 v40, v40, v41")
    e("v_lshlrev_b32 v40, 4, v40"); e(f"v_lshl_add_u32 v{vVd}, v39, 9, v40")
    e("v_and_b32 v39, 3, v39"); e("v_lshlrev_b32 v39, 5, v39"); e("v_lshrrev_b32 v40, 2, v0"); e("v_and_b32 v41, 3, v0")
    e("v_lshlrev_b32 v41, 3, v41"); e("v_lshl_add_u32 v41, v40, 7, v41"); e(f"v_add_u32 v41, {sRing}, v41")
    for j in range(4):
        e(f"v_xor_b32 v40, {32*j}, v39"); e(f"v_add_u32 v{vVr[j]}, v40, v41")
    for i in range(4): e(f"v_mov_b32 v{vOnes+i}, 0x3f803f80")
    stamp()
    a.wait(vm="U0")
    e("s_barrier")
    stamp()
    pending = early[4*pro:] + dma_list(T)

    def vstep(n):
        u, s = n >> 3, n & 7
        x, kpp = VSEQ[u - 16]
        kl, jq = (s & 1, s >> 1) if u == 31 else (s >> 2, s & 3)
        return x, 2 * kpp + kl, kl, jq
    def rd_list(n):
        u, s = n >> 3, n & 7
        slot = (u % NS) * SLOT
        if u < 16: return [(f"ds_read_b128 {ar(F(n))}, v{vKr[s & 3]} offset:{slot + 256*(s >> 2)}", f"F{n}")]
        x, kp, kl, jq = vstep(n)
        o = slot + 4096 * kl
        return [(f"ds_read_b64_tr_b16 {ar(F(n), 2)}, v{vVr[jq]} offset:{o}", f"F{n}"),
                (f"ds_read_b64_tr_b16 {ar(F(n)+2, 2)}, v{vVr[jq]} offset:{o + 2048}", f"F{n}")]
    rd_at = {}
    for r in range(LA, 256):
        n = r - LA
        if r >= 248: n = max(n, 248 - LA2 + max(0, (r - 249) // 2))
        rd_at.setdefault(n, []).extend(rd_list(r))
    def mfmas(n):
        out = []
        if n < 128:
            kt, ss = n >> 3, n & 7
            for m in range(3):
                d = vr(S(kt, m))
                out.append(f"{MF} {d}, {ar(F(n))}, {ar(Q(m, ss))}, {d if ss else 0}")
        else:
            x, kp, kl, jq = vstep(n)
            for m in range(3):
                d = ar(OA(x, jq, m)) if x & 1 else vr(OV(jq, m))
                out.append(f"{MF} {d}, {ar(F(n))}, {vr(S(2*kp, m))}, {d if kp else 0}")
            if x == 3 and jq < 3:
                d = ar(Lr(jq))
                out.append(f"{MF} {d}, {vr(vOnes)}, {vr(S(2*kp, jq))}, {d if kp else 0}")
        return out
    g0 = [0]
    for n in range(256): g0.append(g0[-1] + len(mfmas(n)))
    first_use = {}; last_write = {}
    for n in range(128, 256):
        x, kp, kl, jq = vstep(n)
        first_use.setdefault(kp, n); last_write[(x, jq)] = n

    items = []
    def add(text, slots, deps=(), after=-1, dl=10**6, gate=0, tag=None):
        items.append(dict(t=text, s=slots, deps=list(deps), after=after, dl=dl, gate=gate, tag=tag)); return len(items) - 1
    def pregs(kp, m): return [S(2*kp, m, r) for r in range(4)] + [S(2*kp+1, m, r) for r in range(4)]
    last_r = [[], [], []]
    for kt in range(15):
        for m in range(3):
            aft = g0[8*kt + 7] + m
            dl = g0[8*kt + 16] - 1
            r0 = sLow if kt == 0 else f"v{vR[m]}"
            i0 = add(f"v_max3_f32 v{vR[m]}, {r0}, v{S(kt,m,0)}, v{S(kt,m,1)}", 1, last_r[m], aft, dl)
            i1 = add(f"v_max3_f32 v{vR[m]}, v{vR[m]}, v{S(kt,m,2)}, v{S(kt,m,3)}", 1, [i0], aft, dl)
            last_r[m] = [i1]
        if kt & 1:
            kp = kt >> 1
            dl = g0[16*kp + 32] - 1
            for m in range(3):
                ir = add(f"v_mul_f32_e64 v{RHO(kp,m)}, {sC}, v{vR[m]}", 1, last_r[m], -1, g0[8*kt + 16] - 1)
                last_r[m] = [ir]
                for x in pregs(kp, m):
                    i0 = add(f"v_fma_f32 v{x}, v{x}, {sC}, -v{RHO(kp,m)}", 1, [ir], -1, dl)
                    add(f"v_exp_f32_e64 v{x}, v{x}", 2, [i0], -1, dl)
    left = list(range(len(items))); done = {}; mf_pos = {}
    def release(k0): left.extend(range(k0, len(items)))
    def phase2_items(exp7_left):
        k0 = len(items)
        for kp in range(1, 8):
            for m in range(3):
                dl = g0[first_use[kp]] + m - 3
                if kp < 4: dl = min(dl, g0[first_use_ov[kp]] + m - 3)
                regs = pregs(kp, m)
                i0 = add(f"v_sub_f32_e64 v{RHO(kp,m)}, v{RHO(kp,m)}, v{vM[m]}", 1, [], -1, dl)
                i1 = add(f"v_exp_f32_e64 v{RHO(kp,m)}, v{RHO(kp,m)}", 2, [i0], -1, dl)
                ids = []
                for x in regs:
                    dep = [i1]
                    if x in exp7_left: dep.append(add(f"v_exp_f32_e64 v{x}, v{x}", 2, [], -1, dl))
                    ids.append(add(f"v_mul_f32_e64 v{x}, v{x}, v{RHO(kp,m)}", 1, dep, -1, dl))
                prev = []
                for i in range(4):
                    prev = [add(f"v_cvt_pk_bf16_f32 v{regs[i]}, v{regs[2*i]}, v{regs[2*i+1]}", 1, [ids[2*i], ids[2*i+1]] + prev, -1, dl)]
        release(k0)
    first_use_ov = {jq: min(n for n in range(128, 256) if vstep(n)[0] == 2 and vstep(n)[3] == jq) for jq in range(4)}
    def send_items():
        k0 = len(items)
        dl = g0[send_dl] - 1; gate = 193
        adds = {}
        for (m, p) in msgs:
            for jj in range(2):
                jq = 2 * p + jj
                adds[(jq, m)] = [add(f"v_add_f32_e64 v{OV(jq,m)+r}, v{OV(jq,m)+r}, v{B3(jq,m)+r}", 1, [], g0[last_write[(2, jq)]] + m, dl, gate) for r in range(4)]
        killer = [adds[(2*p + jj, m)] for (m, p) in msgs for jj in range(2)]
        parts = {g: [add(f"v_mov_b32_e64 v{G(g)+3}, v{vNon}", 1, killer[g], -1, dl, gate)] for g in range(8)}
        for t in range(24):
            i, jj, h = t >> 2, (t >> 1) & 1, t & 1
            m, p = msgs[i]; jq = 2 * p + jj; g = t // 3
            parts[g].append(add(f"v_cvt_pk_bf16_f32 v{G(g) + t % 3}, v{OV(jq,m)+2*h}, v{OV(jq,m)+2*h+1}", 1,
                                adds[(jq, m)][2*h:2*h+2] + killer[g], -1, dl, gate))
        for g in range(8):
            add(f"buffer_store_dwordx4 {vr(G(g))}, v{vLane16}, {sW}, {sPin if g < 4 else sPin2} offen offset:{1024*(g & 3)} {xst}", 2, parts[g], -1, dl, gate, "send")
        st = [add(f"v_mov_b32_e64 v{28+m}, v{vM[m]}", 1, [], -1, dl, 176) for m in range(3)] + [add(f"v_mov_b32_e64 v31, v{vNon}", 1, [], -1, dl, 182)]
        add(f"buffer_store_dwordx4 v[28:31], v{vQ16}, {sW}, {sPinS} offen {xst}", 2, st, -1, dl, 182, "send")
        st = []
        for m in range(3):
            i0 = add(f"v_accvgpr_read_b32 v{32+m}, a{Lr(m)}", 1, [], -1, dl, 180)
            st.append(add(f"v_add_f32_e64 v{32+m}, v{32+m}, v{36+m}", 1, [i0], -1, dl, gate))
        st.append(add(f"v_mov_b32_e64 v35, v{vNon}", 1, [], -1, dl, 182))
        add(f"buffer_store_dwordx4 v[32:35], v{vQ16}, {sW}, {sPinS} offen offset:256 {xst}", 2, st, -1, dl, gate, "send")
        release(k0)
    cnt = [0, 0]
    def now():
        for x in a.lines[cnt[0]:]:
            p = hazard.parse(x)
            if p: cnt[1] += p["states"]
        cnt[0] = len(a.lines)
        return cnt[1]
    cur = [0]
    def ready(slots, mem=False):
        t = now(); out = []
        for i in left:
            it = items[i]
            if it["s"] != slots or bool(it["tag"]) != mem or it["gate"] > cur[0]: continue
            if it["after"] >= 0 and (it["after"] not in mf_pos or t - mf_pos[it["after"]] < 8): continue
            if all(d in done and (items[d]["s"] == 1 or t - done[d] >= 1) for d in it["deps"]): out.append(i)
        return out
    def take(slots, mem=False):
        r = ready(slots, mem)
        if not r: return False
        i = min(r, key=lambda k: (items[k]["dl"], k))
        if mem: a.vmem(items[i]["t"], items[i]["tag"])
        else: e(items[i]["t"])
        done[i] = now(); left.remove(i); return True

    sync_step = {8*u - LA: u for u in range(1, 31)}; sync_step[248 - LA2] = 31
    ldsx = {}; waits = {}
    def put(n, op): ldsx.setdefault(n, []).append(op)
    def blk(jq, m): return (jq * 3 + m) * 1024
    for (x, n0, tag) in ((3, 175, "W3"), (1, 223, "W1")):
        ops = [(f"ds_write_b128 v{vWr}, {ar(OA(x, jq, m))} offset:{blk(jq, m)}", tag) for jq in range(4) for m in range(3)]
        for k, op in enumerate(ops): put(n0 + min(k, 10), op)
        if x == 3:
            for m in range(3): put(n0 + 5 + m, (f"ds_write_b32 v{vSt}, a{Lr(m)} offset:{256 + 4*m}", tag))
    k = 0
    put(186, (f"ds_read_b96 v[36:38], v{vSs} offset:256", "B3"))
    for (m, p) in msgs:
        for jj in range(2):
            k += 1
            put(186 + k // 2, (f"ds_read_b128 {vr(B3(2*p+jj, m))}, v{vSb} offset:{blk(2*p+jj, m)}", "B3"))
    waits[193] = "B3"
    k = 0
    for (m, p) in msgs:
        for jj in range(2):
            put(240 + k // 2, (f"ds_read_b128 {vr(B1(2*p+jj, m))}, v{vSb} offset:{blk(2*p+jj, m)}", "B1")); k += 1
    vmx = {98: [(f"buffer_load_dword v{vDum}, v{vZero}, {sW}, {sInS} offen sc1", "pre")],
           100: [(f"global_load_dword v{vNon}, v{vDbg}, {sDbg} sc1", "nonce")],
           102: [(f"buffer_load_dword v{vDum}, v{vZero}, {sW}, {sIn} offen sc1", "pre")],
           104: [(f"buffer_load_dword v{vDum}, v{vZero}, {sW}, {sPin} offen sc1", "pre")],
           106: [(f"buffer_load_dword v{vDum}, v{vZero}, {sO}, {sRow} offen sc1", "pre")]}
    recv = [(f"buffer_load_dwordx4 v[40:43], v{vQ16}, {sW}, {sInS} offen {xld}", "recv"),
            (f"buffer_load_dwordx4 v[44:47], v{vQ16}, {sW}, {sInS} offen offset:256 {xld}", "recv")]
    recv += [(f"buffer_load_dwordx4 {vr(G(g))}, v{vLane16}, {sW}, {sIn if g < 4 else sIn2} offen offset:{1024*(g & 3)} {xld}", "recv") for g in range(8)]
    for k, op in enumerate(recv): vmx.setdefault(n_recv + k // 2, []).append(op)
    def fixed(n):
        u_next = ((n + LA) >> 3) + T
        dma = 2 if (n & 1 and u_next < 32 and not x_nodma) else 0
        return len(rd_at.get(n, [])) + len(ldsx.get(n, [])) + dma + 2 * len(vmx.get(n, [])) + (1 if n in sync_step else 0)
    def overdue(n, gi):
        g = g0[n] + gi
        rel = {}
        for i in left:
            it = items[i]
            rel[i] = it["gate"] <= n and (it["after"] < 0 or it["after"] in mf_pos) and all(d in done or rel[d] for d in it["deps"])
        for D in sorted({items[i]["dl"] for i in left if rel[i]}):
            dem = sum(items[i]["s"] for i in left if items[i]["dl"] <= D)
            sup = 2 * max(0, min(D, g0[256]) - g)
            k = n + 1
            while k < 256 and g0[k] <= D: sup -= fixed(k); k += 1
            if dem > sup: return True
        return False
    def unit_sync(u):
        assert all(it[0] != f"U{u}" for it in pending)
        lg = {24: "W3", 30: "W1"}.get(u)
        vm = ([] if x_nodma and u > T else [f"U{u}"]) + (["send"] if u == 30 else [])
        if vm or lg: a.wait(vm=vm or None, lg=lg)
        e("s_barrier")
        if u & 1 and u > 1: stamp(bar=True)
        if u + T < 32 and not x_nodma: pending.extend(dma_list(u + T))
    def step(n):
        cur[0] = n
        rds = list(rd_at.get(n, [])); lx = list(ldsx.get(n, [])); vx = list(vmx.get(n, []))
        mf = mfmas(n); k = len(mf)
        lft = (7 - ((n + LA) & 7)) // 2 + 1
        due = bool(pending) and bool(n & 1 or len(pending) > lft)
        both = len(rds) >= 2 and (due or vx or len(rds) > 2 or ready(2, True) or len(ready(2)) >= 2 or not ready(1))
        for gi, ins in enumerate(mf):
            e(ins); mf_pos[g0[n] + gi] = now()
            used = 0; nfree = 0
            if gi == k - 1 and n < LAST:
                a.wait(lg=f"F{n+1}"); nfree += 1
            if gi == 0 and n in waits:
                a.wait(lg=waits[n]); nfree += 1
            if gi == 0 and n in sync_step:
                unit_sync(sync_step[n]); nfree += 2
            if gi < 2 and pending and pending[0][1] and (gi == 0 or not due):
                pre = pending[0][1]
                c = len(pre) if due else 1
                for p in pre[:c]: e(p); nfree += 1
                del pre[:c]
            used += max(0, nfree - 1)
            if gi < 2:
                c = (len(rds) + 1) // 2 if len(rds) > 2 and gi == 0 else (len(rds) if both or gi == 1 else 1)
                for x in rds[:c]: a.lds(*x); used += 1
                del rds[:c]
            if lx and gi >= 1:
                a.lds(*lx.pop(0)); used += 1
            if gi == 1 and due and pending and not pending[0][1]:
                dma_emit(pending.pop(0)); used += 2
            elif vx and gi >= 1:
                a.vmem(*vx.pop(0)); used += 2
            elif used < 2 and take(2, True): used += 2
            while used < 2 and left:
                if used == 0 and take(2): used += 2
                elif take(1): used += 1
                else: break
            while left and overdue(n, gi):
                if not (take(1) or take(2) or take(2, True)): break
            late = [items[i] for i in left if items[i]["dl"] <= g0[n] + gi]
            assert not late, (n, gi, late[:3])
        assert not lx and not vx and not rds, n

    for s in range(8):
        for m in range(3):
            a.lds(f"ds_read_b128 {ar(Q(m, s))}, v{35 + (s & 3)} offset:{m*8192 + 256*(s >> 2)}", "Qf")
        if s < LA: a.lds(*rd_list(s)[0])
        if pending and s & 1: dma_emit(pending.pop(0))
    a.wait(lg="all")
    stamp()
    for n in range(128):
        if n % 8 == 0: a.c(f"unit {n >> 3}")
        step(n)
    assert not left
    a.c("row max over the workgroup's keys (sibling wave via LDS); numerators of the last tile; first P tile")
    stamp()
    e("s_nop 6")
    for m in range(3):
        e(f"v_max3_f32 v{vR[m]}, v{vR[m]}, v{S(15,m,0)}, v{S(15,m,1)}"); e(f"v_max3_f32 v{vR[m]}, v{vR[m]}, v{S(15,m,2)}, v{S(15,m,3)}")
    for m in range(3): e(f"v_mul_f32 v{RHO(7,m)}, {sC}, v{vR[m]}")
    f7 = []
    for m in range(3):
        rp, hi = pair(RHO(7, m))
        for t in (14, 15):
            for h in (0, 2):
                f7.append(f"v_pk_fma_f32 {vr(S(t,m,h), 2)}, {vr(S(t,m,h), 2)}, s[32:33], {rp} op_sel:[0,0,{hi}] op_sel_hi:[1,0,{hi}] neg_lo:[0,0,1] neg_hi:[0,0,1]")
    x7 = [x for m in range(3) for x in pregs(7, m)]
    for m in range(3): e(f"v_mov_b32 v{60+m}, v{vR[m]}")
    e(f7.pop(0))
    for m in range(3): e(f"v_permlane32_swap_b32 v{60+m}, v{vR[m]}")
    for m in range(3): e(f"v_max_f32 v{vR[m]}, v{vR[m]}, v{60+m}")
    for m in range(3): e(f"v_mov_b32 v{60+m}, v{vR[m]}")
    e(f7.pop(0))
    for m in range(3): e(f"v_permlane16_swap_b32 v{60+m}, v{vR[m]}")
    for m in range(3): e(f"v_max_f32 v{vM[m]}, v{vR[m]}, v{60+m}")
    a.lds(f"ds_write_b96 v{vSt}, v[16:18]", "Mx")
    for o in f7: e(o)
    for _ in range(max(0, bsh[0] - 10) // 2): x = x7.pop(0); e(f"v_exp_f32 v{x}, v{x}")
    a.wait(lg="Mx")
    e("s_barrier")
    a.lds(f"ds_read_b96 v[60:62], v{vSs}", "Mr")
    for _ in range(bsh[1]): x = x7.pop(0); e(f"v_exp_f32 v{x}, v{x}")
    a.wait(lg="Mr")
    for m in range(3): e(f"v_max_f32 v{vM[m]}, v{vM[m]}, v{60+m}")
    for m in range(3): e(f"v_mul_f32 v{vM[m]}, {sC}, v{vM[m]}")
    for m in range(3): e(f"v_sub_f32 v{RHO(0,m)}, v{RHO(0,m)}, v{vM[m]}")
    for m in range(3): e(f"v_exp_f32 v{RHO(0,m)}, v{RHO(0,m)}")
    for m in range(3):
        rp, hi = pair(RHO(0, m))
        for t in range(2):
            for h in (0, 2):
                e(f"v_pk_mul_f32 {vr(S(t,m,h), 2)}, {vr(S(t,m,h), 2)}, {rp} op_sel:[0,{hi}] op_sel_hi:[1,{hi}]")
        regs = pregs(0, m)
        for i in range(4): e(f"v_cvt_pk_bf16_f32 v{regs[i]}, v{regs[2*i]}, v{regs[2*i+1]}")
    phase2_items(set(x7))

    beta = [48, 50, 60]; alpha = [49, 51, 61]
    tags = [43, 47] + [G(g) + 3 for g in range(8)]
    def tag_check():
        for (op, d) in (("v_max3_u32", 62), ("v_min3_u32", 63)):
            e(f"{op} v{d}, v{vNon}, v{tags[0]}, v{tags[1]}")
            for k in range(2, 10, 2): e(f"{op} v{d}, v{d}, v{tags[k]}, v{tags[k+1]}")
        e("v_cmp_ne_u32 vcc, v62, v63")
    def check():
        a.c("partner's partial sums: tags, combination weights")
        a.wait(vm="recv", lg="B1")
        stamp()
        tag_check()
        e("s_cbranch_vccnz L_retry")
        a.label("L_got")
        stamp()
        k0 = len(items)
        bi = []
        for m in range(3):
            i0 = add(f"v_sub_f32_e64 v{beta[m]}, v{40+m}, v{28+m}", 1)
            i0 = add(f"v_min_f32_e64 v{beta[m]}, v{beta[m]}, 60", 1, [i0])
            items[i0]["t"] = f"v_min_f32 v{beta[m]}, 0x42700000, v{beta[m]}"
            bi.append(add(f"v_exp_f32_e64 v{beta[m]}, v{beta[m]}", 2, [i0]))
        for m in range(3):
            i0 = add(f"v_fma_f32 v{alpha[m]}, v{beta[m]}, v{44+m}, v{32+m}", 1, [bi[m]])
            add(f"v_rcp_f32_e64 v{alpha[m]}, v{alpha[m]}", 2, [i0])
        release(k0)
    for n in range(128, 256):
        if n % 8 == 0: a.c(f"unit {n >> 3}")
        if n == 176: send_items()
        step(n)
        if n == 178:
            e(f"v_cmp_eq_u32 vcc, 0, v{vNon}"); e("s_cbranch_vccnz L_nonce")
            a.label("L_havenonce")
        if n == 192: stamp()
        if n == send_dl: a.c("partial sums sent"); stamp()
        if n == n_chk: check()
    assert not pending
    a.c("final combine")
    stamp()
    cur[0] = 256
    while left:
        if not (take(1) or take(2)): e("s_nop 0")
    e(f"s_mul_i32 s38, {sMh}, {48*512}"); e(f"s_add_u32 {sRow}, {sRow}, s38"); e(f"s_add_u32 {sRow}, {sRow}, {sOwn}")
    order = [0, 2, 4, 1, 3, 5]
    for i in order:
        m, p = msgs[i]
        u0 = [G(8 + 2 * (i & 1)), G(9 + 2 * (i & 1))]
        for jj in range(2):
            for h in range(2):
                t = 4 * i + 2 * jj + h
                src = G(t // 3) + t % 3
                e(f"v_lshlrev_b32 v{u0[jj] + 2*h}, 16, v{src}"); e(f"v_and_b32 v{u0[jj] + 2*h + 1}, {sHi}, v{src}")
        bp = vr(beta[m], 2)
        for jj in range(2):
            o = B1(2*p + jj, m)
            for h in (0, 2): e(f"v_pk_fma_f32 {vr(o + h, 2)}, {vr(u0[jj] + h, 2)}, {bp}, {vr(o + h, 2)} op_sel_hi:[1,0,1]")
        for jj in range(2):
            o = B1(2*p + jj, m)
            for h in (0, 2): e(f"v_pk_add_f32 {vr(o + h, 2)}, {vr(o + h, 2)}, {vr(OV(2*p + jj, m) + h, 2)}")
        for jj in range(2):
            o = B1(2*p + jj, m)
            for h in (0, 2): e(f"v_pk_mul_f32 {vr(o + h, 2)}, {vr(o + h, 2)}, {bp} op_sel:[0,1] op_sel_hi:[1,1]")
        x = OV(2*p, m)
        for jj in range(2):
            o = B1(2*p + jj, m)
            e(f"v_cvt_pk_bf16_f32 v{x + 2*jj}, v{o}, v{o+1}"); e(f"v_cvt_pk_bf16_f32 v{x + 2*jj + 1}, v{o+2}, v{o+3}")
        e(f"s_add_u32 s38, {sRow}, {8192*m}")
        if swaps:
            e("s_nop 0")
            e(f"v_permlane32_swap_b32 v{x}, v{x+2}"); e(f"v_permlane32_swap_b32 v{x+1}, v{x+3}")
            e("s_nop 0")
            e(f"v_permlane16_swap_b32 v{x}, v{x+2}"); e(f"v_permlane16_swap_b32 v{x+1}, v{x+3}")
            a.vmem(f"buffer_store_dwordx4 {vr(x)}, v{vOut}, {sO}, s38 offen offset:{64*p} {opol}", "out")
        else:
            for jj in range(2):
                a.vmem(f"buffer_store_dwordx2 {vr(x + 2*jj, 2)}, v{vOut}, {sO}, s38 offen offset:{64*p + 32*jj} {opol}", "out")
    if tl:
        stamp()
        e("s_waitcnt vmcnt(0)")
        stamp()
        e("s_waitcnt lgkmcnt(0)")
        e("s_lshl_b32 s38, s2, 2"); e("s_add_u32 s38, s38, s3"); e("s_lshl_b32 s38, s38, 6"); e("s_add_u32 s38, s38, 0x1010000")
        e("v_mov_b32 v8, s38")
        for k in tls[:16]:
            e(f"v_mov_b32 v4, s{64+2*k}")
            e(f"global_store_dword v8, v4, s[58:59] offset:{4*k}")
    if spin:
        e("s_waitcnt vmcnt(0)")
        a.label("L_spin")
        e("s_memrealtime s[44:45]"); e("s_waitcnt lgkmcnt(0)")
        e("s_sub_u32 s44, s44, s40"); e(f"s_cmp_lt_u32 s44, {spin*100}"); e("s_cbranch_scc1 L_spin")
    if stamps:
        e("s_waitcnt vmcnt(0)")
        e("s_memrealtime s[42:43]")
        e("s_lshl_b32 s38, s2, 2"); e("s_add_u32 s38, s38, s3"); e("s_lshl_b32 s38, s38, 4"); e("s_add_u32 s38, s38, 0x1000000")
        e("s_waitcnt lgkmcnt(0)")
        e("v_mov_b32 v4, s40"); e("v_mov_b32 v5, s41"); e("v_mov_b32 v6, s42"); e("v_mov_b32 v7, s43"); e("v_mov_b32 v8, s38")
        e("s_mov_b64 exec, 1")
        e("global_store_dwordx4 v8, v[4:7], s[58:59]")
    e("s_endpgm")
    a.c("slow paths: the nonce or the partner's data was not there yet")
    a.label("L_nonce")
    e("s_mov_b32 s39, 0x100000")
    a.label("L_nonce2")
    e(f"global_load_dword v{vNon}, v{vDbg}, {sDbg} sc1")
    e("s_sub_u32 s39, s39, 1"); e("s_cmp_eq_u32 s39, 0")
    e("s_waitcnt vmcnt(0)")
    e("s_cbranch_scc1 L_havenonce")
    e(f"v_cmp_eq_u32 vcc, 0, v{vNon}"); e("s_cbranch_vccnz L_nonce2")
    e("s_branch L_havenonce")
    a.label("L_retry")
    e("s_mov_b32 s39, 0x80000")
    a.label("L_retry2")
    for op, _ in recv: e(op)
    e("s_sub_u32 s39, s39, 1"); e("s_cmp_eq_u32 s39, 0")
    e("s_waitcnt vmcnt(0)")
    e("s_cbranch_scc1 L_got")
    tag_check()
    e("s_cbranch_vccnz L_retry2")
    e("s_branch L_got")
    a.label("L_end")
    e("s_endpgm")
    return kernel_file(a.text(), notes=NOTES, sgpr=100 if tl else 64)

def emit(variants, tl_only=False):
    names = []
    for n, kw in variants.items():
        src = gen(**kw)
        L = src.split("\n")
        for b in hazard.check(L): print("HAZARD", n, b)
        ks = [next(i for i, x in enumerate(L) if key in x) for key in ("; unit 0", "row max over", "; unit 16", "; unit 24", "final combine", "slow paths")]
        print(n, "est cycles: pro", hazard.estimate(L[:ks[0]]), "ph1", hazard.estimate(L[ks[0]:ks[1]]), "bnd", hazard.estimate(L[ks[1]:ks[2]]),
              "2a", hazard.estimate(L[ks[2]:ks[3]]), "2b", hazard.estimate(L[ks[3]:ks[4]]), "tail", hazard.estimate(L[ks[4]:ks[5]]))
        if not tl_only:
            open(f"cdna_kernels/{n}.s", "w").write(src)
            build_co(gen(stamps=True, **kw), f"bench/{n}")
        build_co(gen(stamps=True, tl=True, **kw), f"bench/{n}_tl")
        build_co(gen(stamps=True, tl=True, tlb=True, **kw), f"bench/{n}_tb")
        names.append(n)
    for sfx in ("", "_tl", "_tb"): print(" ".join(n + sfx + ".co" for n in names))
    print(str(["bench/host"] + [f"bench/{n}{sfx}.co" for n in names for sfx in (("_tl", "_tb") if tl_only else ("", "_tl", "_tb"))]).replace("'", '"'))
    print(str([f"cdna_kernels/{n}.s" for n in names]).replace("'", '"'))

if __name__ == "__main__":
    emit({"e1": {}, "e1_ns": dict(swaps=False)})
```

```python
import sys, struct
from asmlib import *
import hazard

C_SCALE = 0.0625 * 1.4426950408889634
def f32bits(x): return struct.unpack("<I", struct.pack("<f", x))[0]

RING = 81920
SLOT = 8192
LAST = 255
WSTAT = 0x800000

NOTES = """; GQA attention. Workgroup = 96 query rows (one q head) x 512 keys, wave = 48 rows x 256 keys.
"""
THR = 16.0

VSEQ = [(3, 0), (2, 0), (3, 1), (2, 1), (3, 2), (3, 3), (2, 2), (2, 3)] + [(1, k) for k in range(4)] + [(0, k) for k in range(4)]

def gen(pol="nt", qpol="", opol="", W=7, LA=6, LA2=2, NS=6, T=4, pro=3, stamps=False, tl=False, tlb=False, clk=False, spin=0,
        xst="sc1", xld="sc1", send_dl=202, mode="flag", n_flag=28, n_recv=236, n_poll=240, n_chk=247, swaps=True, x_nodma=False, thr=THR):
    a = Asm(); e = a.e
    STAT = NS * SLOT
    assert STAT + 24576 + 1024 <= RING
    vKd = [1, 2, 3, 4]; vKr = [5, 6, 7, 8]; vVr = [9, 10, 11, 12]; vR = [13, 14, 15]; vM = [16, 17, 18]; vVd = 19
    TAG = mode == "tag"
    vOnes = 20; vNon = 24; vDum = 25; vZero = 26; vLane16 = 27
    vDbg, vSt, vSs, vWr, vSb, vQ16, vOut = 52, 53, 54, 55, 56, 57, 58
    def S(kt, m, r=0): return 64 + (kt * 3 + m) * 4 + r
    def Z(i): return S(2 * (i // 3) + 1, i % 3)
    def vr(b, n=4): return f"v[{b}:{b+n-1}]"
    def ar(b, n=4): return f"a[{b}:{b+n-1}]"
    def pair(r): return (vr(r & ~1, 2), r & 1)
    def Q(m, s): return (m * 8 + s) * 4
    def OA(x, jq, m): return ((4 * (x >> 1) + jq) * 3 + m) * 4
    def OV(jq, m): return Z(jq * 3 + m)
    def B3(jq, m): return Z(12 + jq * 3 + m)
    def B1(jq, m): return S(2 * jq, m)
    msgs = [(m, p) for m in range(3) for p in range(2)]
    dead = [B3(2 * p + jj, m) for (m, p) in msgs for jj in range(2)]
    def G(g): return dead[g]
    def Lr(m): return 192 + 4 * m
    def F(n): return 204 + 4 * (n % W)
    sQ, sK, sV, sO, sW = "s[12:15]", "s[16:19]", "s[20:23]", "s[24:27]", "s[48:51]"
    sKb, sDst, sRing, sT, sC, sRow, sOwn = "s28", "s29", "s30", "s31", "s32", "s33", "s34"
    sMh, sKq, sGrp, sMem, sIn, sPin, sSib, sLow = "s35", "s46", "s47", "s52", "s53", "s54", "s55", "s44"
    sVb = ["s60", "s61", "s62", "s63"]
    sIn2, sPin2, sInS, sPinS, sHi, sThr = "s4", "s5", "s6", "s7", "s8", "s9"
    sDbg = "s[56:57]"
    MF = "v_mfma_f32_16x16x32_bf16"
    tls = []
    def stamp(bar=False):
        if tl and bar == tlb:
            k = len(tls); tls.append(k)
            e(f"{'s_memtime' if clk else 's_memrealtime'} s[{64+2*k}:{65+2*k}]")

    e("s_cmp_ge_u32 s2, 256"); e("s_cbranch_scc1 L_end")
    e("s_memrealtime s[40:41]")
    if tl and clk: e("s_memtime s[64:65]")
    e("s_load_dwordx4 s[4:7], s[0:1], 0"); e("s_load_dwordx4 s[8:11], s[0:1], 16"); e("s_load_dwordx4 s[56:59], s[0:1], 32")
    a.c("pull the kernel's code into L2")
    e("s_getpc_b64 s[36:37]")
    e("v_lshlrev_b32 v28, 7, v0")
    e("v_min_u32 v28, L_nonce - L_pc, v28")
    a.label("L_pc")
    a.vmem(f"global_load_dword v{vDum}, v28, s[36:37]", "code")
    e("v_lshrrev_b32 v30, 6, v0"); e("v_and_b32 v0, 63, v0")
    e("v_readfirstlane_b32 s3, v30")
    a.c("workgroup -> (kv group, q head of the group, key half); ids equal mod 8 work on one group")
    e(f"s_and_b32 {sGrp}, s2, 7"); e("s_lshr_b32 s39, s2, 5"); e("s_lshl_b32 s39, s39, 3"); e(f"s_add_u32 {sGrp}, {sGrp}, s39")
    e(f"s_bfe_u32 {sMem}, s2, 0x20003")
    e(f"s_and_b32 s39, {sMem}, 1"); e(f"s_lshl_b32 s38, {sGrp}, 1"); e("s_add_u32 s38, s38, s39"); e(f"s_mul_i32 {sRow}, s38, {96*512}")
    e(f"s_lshr_b32 s45, {sMem}, 1"); e(f"s_lshl_b32 s43, {sGrp}, 19"); e("s_lshl_b32 s38, s45, 18"); e("s_add_u32 s43, s43, s38")
    e(f"s_and_b32 {sMh}, s3, 1"); e(f"s_lshr_b32 {sKq}, s3, 1")
    a.c("K unit u of ring kq = 16-key tile 2u+kq of the key half; wave mh loads rows 8*mh..")
    e(f"s_lshl_b32 s38, {sKq}, 13"); e("s_add_u32 s43, s43, s38"); e(f"s_lshl_b32 s38, {sMh}, 12"); e(f"s_add_u32 {sKb}, s43, s38")
    e(f"s_mul_i32 {sRing}, {sKq}, {RING}"); e(f"s_add_u32 {sDst}, {sRing}, s38")
    a.c("K / Q DMA source offsets")
    e("v_lshrrev_b32 v30, 5, v0"); e("v_and_b32 v31, 31, v0"); e("v_lshlrev_b32 v32, 1, v30"); e("v_xor_b32 v31, v31, v32")
    e("v_lshlrev_b32 v31, 4, v31"); e(f"v_lshl_add_u32 v{vKd[0]}, v30, 9, v31")
    for n in range(1, 4): e(f"v_xor_b32 v{vKd[n]}, {64*n}, v{vKd[0]}")
    e(f"s_lshl_b32 s38, {sMh}, 7")
    e(f"v_xor_b32 v33, s38, v{vKd[0]}"); e(f"v_xor_b32 v34, s38, v{vKd[1]}")
    e("s_lshl_b32 s39, s3, 11")
    e(f"s_add_u32 {sT}, {sRow}, s39")
    e("s_waitcnt lgkmcnt(0)")
    if tl:
        tls.append(0)
        if not clk: e("s_mov_b32 s64, s40")
    e("s_mov_b32 s12, s4"); e("s_mov_b32 s13, s5"); e("s_mov_b32 s14, 6291456"); e("s_mov_b32 s15, 0x20000")
    e("s_mov_b32 s16, s6"); e("s_mov_b32 s17, s7"); e("s_mov_b32 s18, 0x2000000"); e("s_mov_b32 s19, 0x20000")
    for t in range(6):
        e(f"s_add_u32 m0, s39, {(t // 3)*RING + STAT + (t % 3)*8192}")
        if t: e(f"s_add_u32 {sT}, {sT}, 8192")
        else: e("s_nop 0")
        a.vmem(f"buffer_load_dwordx4 v33, {sQ}, {sT} offen {qpol} lds", "Q")
        a.vmem(f"buffer_load_dwordx4 v34, {sQ}, {sT} offen offset:1024 {qpol} lds", "Q")

    def dma_list(u):
        slot = (u % NS) * SLOT
        out = []
        for n in range(4):
            off = f" offset:{1024*n}" if n else ""
            pre = [f"s_add_u32 m0, {sDst}, {slot}"] if n == 0 else []
            if u < 16:
                if n == 0: pre.append(f"s_add_u32 {sT}, {sKb}, {u*16384}")
                ins = f"buffer_load_dwordx4 v{vKd[n]}, {sK}, {sT} offen{off} {pol} lds"
            else:
                x, kpp = VSEQ[u - 16]
                pre.append(f"s_add_u32 {sT}, {sVb[x]}, {kpp*65536 + (0, 3072, 14336, 17408)[n]}")
                ins = f"buffer_load_dwordx4 v{vVd}, {sV}, {sT} offen{off} {pol} lds"
            out.append([f"U{u}", pre, ins])
        return out
    def dma_emit(item):
        tag, pre, ins = item
        for p in pre: e(p)
        a.vmem(ins, tag)
    early = [it for u in range(T) for it in dma_list(u)]
    for it in early[:4*pro]: dma_emit(it)
    e("s_mov_b32 s20, s8"); e("s_mov_b32 s21, s9"); e("s_mov_b32 s22, 0x2000000"); e("s_mov_b32 s23, 0x20000")
    e("s_mov_b32 s24, s10"); e("s_mov_b32 s25, s11"); e("s_mov_b32 s26, 6291456"); e("s_mov_b32 s27, 0x20000")
    e("s_mov_b32 s48, s58"); e("s_mov_b32 s49, s59"); e(f"s_mov_b32 s50, {WSTAT + 1024*512}"); e("s_mov_b32 s51, 0x20000")
    e(f"s_mov_b32 {sC}, {hex(f32bits(C_SCALE))}"); e(f"s_mov_b32 {sLow}, 0xff7fffff"); e(f"s_mov_b32 {sHi}, 0xffff0000"); e(f"s_mov_b32 {sThr}, {hex(f32bits(thr))}")
    e(f"s_lshl_b32 {sOwn}, s45, 1"); e(f"s_add_u32 {sOwn}, {sOwn}, {sKq}"); e(f"s_lshl_b32 {sOwn}, {sOwn}, 7")
    e(f"s_lshl_b32 s38, {sMh}, 15"); e("s_add_u32 s43, s43, s38"); e(f"s_add_u32 {sVb[0]}, s43, {sOwn}")
    for x in range(1, 4): e(f"s_xor_b32 {sVb[x]}, {sVb[0]}, {128*x}")
    e("s_lshl_b32 s38, s2, 2"); e("s_add_u32 s38, s38, s3"); e(f"s_lshl_b32 {sIn}, s38, 13"); e(f"s_xor_b32 {sPin}, {sIn}, {64 << 13}")
    e(f"s_add_u32 {sIn2}, {sIn}, 4096"); e(f"s_add_u32 {sPin2}, {sPin}, 4096")
    e("s_lshl_b32 s38, s38, 9"); e(f"s_add_u32 {sInS}, s38, {WSTAT}"); e(f"s_xor_b32 {sPinS}, {sInS}, {64 << 9}")
    a.c("the group's first workgroup publishes the launch nonce")
    e(f"s_lshl_b32 s38, {sGrp}, 2"); e(f"v_mov_b32 v{vZero}, 0"); e(f"v_mov_b32 v{vDbg}, s38")
    e(f"s_or_b32 s38, {sMem}, s3"); e("s_cmp_eq_u32 s38, 0"); e("s_cbranch_scc0 L_nopub")
    e("s_or_b32 s38, s40, 1"); e("v_mov_b32 v46, s38")
    e(f"global_store_dword v{vDbg}, v46, {sDbg} sc1")
    a.label("L_nopub")
    a.c("K fragment read addresses (v35..v38: the same pattern for the Q tiles)")
    e("v_and_b32 v30, 15, v0"); e("v_lshrrev_b32 v31, 4, v0"); e("v_and_b32 v32, 7, v0"); e("v_lshlrev_b32 v32, 1, v32")
    e("v_xor_b32 v32, v32, v31"); e("v_lshlrev_b32 v32, 4, v32"); e("v_lshl_add_u32 v35, v30, 9, v32")
    for s in range(1, 4): e(f"v_xor_b32 v{35+s}, {64*s}, v35")
    e(f"s_mul_i32 s38, {sMh}, {RING}"); e(f"s_add_u32 s38, s38, {STAT}")
    for s in range(4):
        e(f"v_add_u32 v{vKr[s]}, {sRing}, v{35+s}")
        e(f"v_add_u32 v{35+s}, s38, v{35+s}")
    a.c("exchange-area and output addresses")
    e(f"v_lshlrev_b32 v{vQ16}, 4, v30"); e(f"v_lshlrev_b32 v{vLane16}, 4, v0")
    e(f"v_lshlrev_b32 v{vOut}, {4 if swaps else 3}, v31"); e(f"v_lshl_add_u32 v{vOut}, v30, 9, v{vOut}")
    e(f"s_mul_i32 s38, {sMh}, 12288"); e(f"s_add_u32 s38, s38, {STAT}"); e(f"s_add_u32 s39, s38, {sRing}")
    e(f"v_add_u32 v{vWr}, s39, v{vLane16}")
    e(f"s_xor_b32 {sSib}, {sKq}, 1"); e(f"s_mul_i32 {sSib}, {sSib}, {RING}"); e(f"s_add_u32 s39, s38, {sSib}")
    e(f"v_add_u32 v{vSb}, s39, v{vLane16}")
    e(f"s_lshl_b32 s38, {sMh}, 9"); e(f"s_add_u32 s38, s38, {STAT + 24576}")
    e(f"s_add_u32 s39, s38, {sRing}"); e(f"v_add_u32 v{vSt}, s39, v{vQ16}")
    e(f"s_add_u32 s39, s38, {sSib}"); e(f"v_add_u32 v{vSs}, s39, v{vQ16}")
    a.c("V DMA source offset and transposed-read addresses (128-byte rows)")
    e("v_lshrrev_b32 v39, 3, v0"); e("v_and_b32 v40, 6, v39"); e("v_and_b32 v41, 7, v0"); e("v_xor_b32 v40, v40, v41")
    e("v_lshlrev_b32 v40, 4, v40"); e(f"v_lshl_add_u32 v{vVd}, v39, 9, v40")
    e("v_and_b32 v39, 3, v39"); e("v_lshlrev_b32 v39, 5, v39"); e("v_lshrrev_b32 v40, 2, v0"); e("v_and_b32 v41, 3, v0")
    e("v_lshlrev_b32 v41, 3, v41"); e("v_lshl_add_u32 v41, v40, 7, v41"); e(f"v_add_u32 v41, {sRing}, v41")
    for j in range(4):
        e(f"v_xor_b32 v40, {32*j}, v39"); e(f"v_add_u32 v{vVr[j]}, v40, v41")
    for i in range(4): e(f"v_mov_b32 v{vOnes+i}, 0x3f803f80")
    stamp()
    a.wait(vm="U0")
    e("s_barrier")
    stamp()
    pending = early[4*pro:] + dma_list(T)

    def vstep(n):
        u, s = n >> 3, n & 7
        x, kpp = VSEQ[u - 16]
        kl, jq = (s & 1, s >> 1) if u == 31 else (s >> 2, s & 3)
        return x, 2 * kpp + kl, kl, jq
    def rd_list(n):
        u, s = n >> 3, n & 7
        slot = (u % NS) * SLOT
        if u < 16: return [(f"ds_read_b128 {ar(F(n))}, v{vKr[s & 3]} offset:{slot + 256*(s >> 2)}", f"F{n}")]
        x, kp, kl, jq = vstep(n)
        o = slot + 4096 * kl
        return [(f"ds_read_b64_tr_b16 {ar(F(n), 2)}, v{vVr[jq]} offset:{o}", f"F{n}"),
                (f"ds_read_b64_tr_b16 {ar(F(n)+2, 2)}, v{vVr[jq]} offset:{o + 2048}", f"F{n}")]
    rd_at = {}
    for r in range(LA, 256):
        n = r - LA
        if r >= 248: n = max(n, 248 - LA2 + max(0, (r - 249) // 2))
        rd_at.setdefault(n, []).extend(rd_list(r))
    def mfmas(n):
        out = []
        if n < 128:
            kt, ss = n >> 3, n & 7
            for m in range(3):
                d = vr(S(kt, m))
                out.append(f"{MF} {d}, {ar(F(n))}, {ar(Q(m, ss))}, {d if ss else 0}")
        else:
            x, kp, kl, jq = vstep(n)
            for m in range(3):
                d = ar(OA(x, jq, m)) if x & 1 else vr(OV(jq, m))
                out.append(f"{MF} {d}, {ar(F(n))}, {vr(S(2*kp, m))}, {d if kp else 0}")
            if x == 3 and jq < 3:
                d = ar(Lr(jq))
                out.append(f"{MF} {d}, {vr(vOnes)}, {vr(S(2*kp, jq))}, {d if kp else 0}")
        return out
    g0 = [0]
    for n in range(256): g0.append(g0[-1] + len(mfmas(n)))
    first_use = {}; last_write = {}
    for n in range(128, 256):
        x, kp, kl, jq = vstep(n)
        first_use.setdefault(kp, n); last_write[(x, jq)] = n

    items = []
    def add(text, slots, deps=(), after=-1, dl=10**6, gate=0, tag=None, dist=0):
        items.append(dict(t=text, s=slots, deps=list(deps), after=after, dl=dl, gate=gate, tag=tag, dist=dist)); return len(items) - 1
    def pregs(kp, m): return [S(2*kp, m, r) for r in range(4)] + [S(2*kp+1, m, r) for r in range(4)]
    def p_items(kp, deps, dls):
        out = []
        for m in range(3):
            regs = pregs(kp, m); ids = []
            for x in regs:
                i0 = add(f"v_fma_f32 v{x}, v{x}, {sC}, -v{vM[m]}", 1, deps[m], -1, dls[m])
                ids.append(add(f"v_exp_f32_e64 v{x}, v{x}", 2, [i0], -1, dls[m]))
            prev = []
            for i in range(4):
                prev = [add(f"v_cvt_pk_bf16_f32 v{regs[i]}, v{regs[2*i]}, v{regs[2*i+1]}", 1, [ids[2*i], ids[2*i+1]] + prev, -1, dls[m])]
            out += prev
        return out
    def chk_text(kp):
        return [f"v_fma_f32 v{28+m}, v{vR[m]}, {sC}, -v{vM[m]}" for m in range(3)] + ["v_max3_f32 v28, v28, v29, v30",
                f"v_cmp_lt_f32 vcc, {sThr}, v28\n    s_cbranch_vccnz L_bump{kp}\nL_back{kp}:"]
    last_r = [[], [], []]; last_p = []
    for kt in range(15):
        for m in range(3):
            aft = g0[8*kt + 7] + m
            dl = g0[8*kt + 16] - 1
            r0 = sLow if kt == 0 else f"v{vR[m]}"
            i0 = add(f"v_max3_f32 v{vR[m]}, {r0}, v{S(kt,m,0)}, v{S(kt,m,1)}", 1, last_r[m], aft, dl)
            i1 = add(f"v_max3_f32 v{vR[m]}, v{vR[m]}, v{S(kt,m,2)}, v{S(kt,m,3)}", 1, [i0], aft, dl)
            last_r[m] = [i1]
        if kt & 1:
            kp = kt >> 1
            dl1 = g0[8*kt + 16] - 1
            if kp == 0:
                deps = []
                for m in range(3):
                    t0, t1 = 32 + 2*m, 33 + 2*m
                    i0 = add(f"v_mov_b32_e64 v{t0}, v{vR[m]}", 1, last_r[m], -1, dl1); i1 = add(f"v_mov_b32_e64 v{t1}, v{vR[m]}", 1, last_r[m], -1, dl1)
                    last_r[m] = [i0, i1]
                    i2 = add(f"v_permlane32_swap_b32 v{t0}, v{t1}", 1, [i0, i1], -1, dl1, dist=2)
                    i3 = add(f"v_max_f32_e64 v{t0}, v{t0}, v{t1}", 1, [i2], -1, dl1)
                    i4 = add(f"v_mov_b32_e64 v{t1}, v{t0}", 1, [i3], -1, dl1)
                    i5 = add(f"v_permlane16_swap_b32 v{t0}, v{t1}", 1, [i4], -1, dl1, dist=2)
                    i6 = add(f"v_max_f32_e64 v{t0}, v{t0}, v{t1}", 1, [i5], -1, dl1)
                    i7 = add(f"v_mul_f32_e64 v{t0}, {sC}, v{t0}", 1, [i6], -1, dl1)
                    deps.append([add(f"v_ceil_f32_e64 v{vM[m]}, v{t0}", 1, [i7], -1, dl1)])
            else:
                tx = chk_text(kp)
                ds = [add(tx[m], 1, last_r[m], -1, dl1) for m in range(3)]
                i0 = add(tx[3], 1, ds, -1, dl1)
                ic = add(tx[4], 3, [i0] + last_p, -1, dl1)
                for m in range(3): last_r[m] = [ic]
                deps = [[ic]] * 3
            last_p = p_items(kp, deps, [g0[16*kp + 32] - 1] * 3)
    left = list(range(len(items))); done = {}; mf_pos = {}
    def release(k0): left.extend(range(k0, len(items)))
    phi_o = [48, 50, 60]; phi_s = [49, 51, 61]
    def PK(i): return G(2 * i)
    def RC(i): return G(2 * i + 1)
    def send_items():
        k0 = len(items)
        dl = g0[send_dl] - 1; gate = 193
        ph = []
        for m in range(3):
            i0 = add(f"v_max_f32_e64 v{28+m}, v{vM[m]}, v{40+m}", 1, [], -1, g0[186], 148)
            i1 = add(f"v_sub_f32_e64 v{phi_o[m]}, v{vM[m]}, v{28+m}", 1, [i0], -1, g0[186], 148)
            i2 = add(f"v_sub_f32_e64 v{phi_s[m]}, v{40+m}, v{28+m}", 1, [i0], -1, g0[186], 148)
            ph.append([add(f"v_exp_f32_e64 v{phi_o[m]}, v{phi_o[m]}", 2, [i1], -1, g0[186], 148),
                       add(f"v_exp_f32_e64 v{phi_s[m]}, v{phi_s[m]}", 2, [i2], -1, g0[186], 148)])
        adds = {}
        for i, (m, p) in enumerate(msgs):
            for jj in range(2):
                jq = 2 * p + jj
                adds[(jq, m)] = []
                for r in range(4):
                    i0 = add(f"v_mul_f32_e64 v{B3(jq,m)+r}, v{B3(jq,m)+r}, v{phi_s[m]}", 1, [ph[m][1]], -1, dl, 190 if i < 3 else gate)
                    adds[(jq, m)].append(add(f"v_fma_f32 v{OV(jq,m)+r}, v{OV(jq,m)+r}, v{phi_o[m]}, v{B3(jq,m)+r}", 1, [i0, ph[m][0]],
                                             g0[last_write[(2, jq)]] + m, dl, gate))
        killer = [adds[(2*p + jj, m)] for (m, p) in msgs for jj in range(2)]
        ng = 8 if TAG else 6
        parts = {g: [add(f"v_mov_b32_e64 v{G(g)+3}, v{vNon}", 1, killer[g], -1, dl, gate)] if TAG else [] for g in range(ng)}
        for t in range(24):
            i, jj, h = t >> 2, (t >> 1) & 1, t & 1
            m, p = msgs[i]; jq = 2 * p + jj
            g, dst, kill = (t // 3, G(t // 3) + t % 3, killer[t // 3]) if TAG else (i, PK(i) + (t & 3), killer[2 * i])
            parts[g].append(add(f"v_cvt_pk_bf16_f32 v{dst}, v{OV(jq,m)+2*h}, v{OV(jq,m)+2*h+1}", 1, adds[(jq, m)][2*h:2*h+2] + kill, -1, dl, gate))
        for g in range(ng):
            add(f"buffer_store_dwordx4 {vr(G(g) if TAG else PK(g))}, v{vLane16}, {sW}, {sPin if g < 4 else sPin2} offen offset:{1024*(g & 3)} {xst}", 2, parts[g], -1, dl, gate, "send")
        dl2 = dl if TAG else g0[8 * n_flag - LA] - 1
        st = [add(f"v_mov_b32_e64 v31, v{vNon}", 1, [], -1, dl2, 182), add(f"v_mov_b32_e64 v35, v{vNon}", 1, [], -1, dl2, 182)]
        for m in range(3):
            i0 = add(f"v_accvgpr_read_b32 v{32+m}, a{Lr(m)}", 1, [], -1, dl2, 180)
            i0 = add(f"v_mul_f32_e64 v{32+m}, v{32+m}, v{phi_o[m]}", 1, [i0, ph[m][0]], -1, dl2, 180)
            st.append(add(f"v_fma_f32 v{32+m}, v{36+m}, v{phi_s[m]}, v{32+m}", 1, [i0, ph[m][1]], -1, dl2, 190))
        if TAG:
            for op in stat_stores: add(op, 2, st, -1, dl, gate, "send")
        release(k0)
    stat_stores = [f"buffer_store_dwordx4 v[28:31], v{vQ16}, {sW}, {sPinS} offen sc1", f"buffer_store_dwordx4 v[32:35], v{vQ16}, {sW}, {sPinS} offen offset:256 sc1"]
    cnt = [0, 0]
    def now():
        for x in a.lines[cnt[0]:]:
            p = hazard.parse(x)
            if p: cnt[1] += p["states"]
        cnt[0] = len(a.lines)
        return cnt[1]
    cur = [0]
    def ready(slots, mem=False):
        t = now(); out = []
        for i in left:
            it = items[i]
            if it["s"] != slots or bool(it["tag"]) != mem or it["gate"] > cur[0]: continue
            if it["after"] >= 0 and (it["after"] not in mf_pos or t - mf_pos[it["after"]] < 8): continue
            if all(d in done and t - done[d] >= max(it["dist"], 1 if items[d]["s"] == 2 else 0) for d in it["deps"]): out.append(i)
        return out
    def take(slots, mem=False):
        r = ready(slots, mem)
        if not r: return False
        i = min(r, key=lambda k: (items[k]["dl"], k))
        if mem: a.vmem(items[i]["t"], items[i]["tag"])
        else:
            for ln in items[i]["t"].split("\n"): a.lines.append(ln if ln.endswith(":") else "    " + ln.strip())
        done[i] = now(); left.remove(i); return True

    sync_step = {8*u - LA: u for u in range(1, 31)}; sync_step[248 - LA2] = 31
    ldsx = {}; waits = {}
    def put(n, op): ldsx.setdefault(n, []).append(op)
    def blk(jq, m): return (jq * 3 + m) * 1024
    for (x, n0, tag) in ((3, 175, "W3"), (1, 223, "W1")):
        ops = [(f"ds_write_b128 v{vWr}, {ar(OA(x, jq, m))} offset:{blk(jq, m)}", tag) for jq in range(4) for m in range(3)]
        for k, op in enumerate(ops): put(n0 + min(k, 10), op)
        if x == 3:
            for m in range(3): put(n0 + 5 + m, (f"ds_write_b32 v{vSt}, a{Lr(m)} offset:{256 + 4*m}", tag))
    put(130, (f"ds_write_b96 v{vSt}, v[16:18]", "Wr"))
    put(146, (f"ds_read_b96 v[40:42], v{vSs}", "Rr")); waits[148] = "Rr"
    k = 0
    put(186, (f"ds_read_b96 v[36:38], v{vSs} offset:256", "B3a"))
    for (m, p) in msgs:
        for jj in range(2):
            k += 1
            put(186 + k // 2, (f"ds_read_b128 {vr(B3(2*p+jj, m))}, v{vSb} offset:{blk(2*p+jj, m)}", "B3a" if k <= 6 else "B3"))
    waits[190] = "B3a"; waits[193] = "B3"
    k = 0
    for (m, p) in msgs:
        for jj in range(2):
            put(240 + k // 2, (f"ds_read_b128 {vr(B1(2*p+jj, m))}, v{vSb} offset:{blk(2*p+jj, m)}", "B1")); k += 1
    vmx = {90: [(f"buffer_load_dword v{vDum}, v{vZero}, {sW}, {sInS} offen sc1", "pre")],
           98: [(f"global_load_dword v{vNon}, v{vDbg}, {sDbg} sc1", "nonce")],
           106: [(f"buffer_load_dword v{vDum}, v{vZero}, {sW}, {sIn} offen sc1", "pre")],
           114: [(f"buffer_load_dword v{vDum}, v{vZero}, {sW}, {sPin} offen sc1", "pre")],
           140: [(f"buffer_load_dword v{vDum}, v{vZero}, {sO}, {sRow} offen sc1", "pre")]}
    rstat = [(f"buffer_load_dwordx4 v[40:43], v{vQ16}, {sW}, {sInS} offen sc1", "rstat"),
             (f"buffer_load_dwordx4 v[44:47], v{vQ16}, {sW}, {sInS} offen offset:256 sc1", "rstat")]
    rdata = [(f"buffer_load_dwordx4 {vr(G(g) if TAG else RC(g))}, v{vLane16}, {sW}, {sIn if g < 4 else sIn2} offen offset:{1024*(g & 3)} {xld}", f"rc{g}")
             for g in range(8 if TAG else 6)]
    if TAG:
        for k, op in enumerate(rstat + rdata): vmx.setdefault(n_recv + k // 2, []).append(op)
    else:
        vmx[n_poll] = list(rstat)
        vmx[8 * n_flag - LA] = [(op, "flag") for op in stat_stores]
    def fixed(n):
        u_next = ((n + LA) >> 3) + T
        dma = 2 if (n & 1 and u_next < 32 and not x_nodma) else 0
        return len(rd_at.get(n, [])) + len(ldsx.get(n, [])) + dma + 2 * len(vmx.get(n, [])) + (1 if n in sync_step else 0)
    def overdue(n, gi):
        g = g0[n] + gi
        rel = {}
        for i in left:
            it = items[i]
            rel[i] = it["gate"] <= n and (it["after"] < 0 or it["after"] in mf_pos) and all(d in done or rel[d] for d in it["deps"])
        for D in sorted({items[i]["dl"] for i in left if rel[i]}):
            dem = sum(items[i]["s"] for i in left if items[i]["dl"] <= D)
            sup = 2 * max(0, min(D, g0[256]) - g)
            k = n + 1
            while k < 256 and g0[k] <= D: sup -= fixed(k); k += 1
            if dem > sup: return True
        return False
    def unit_sync(u):
        assert all(it[0] != f"U{u}" for it in pending)
        lg = {18: "Wr", 24: "W3", 30: "W1"}.get(u)
        vm = ([] if x_nodma and u > T else [f"U{u}"]) + (["send"] if u == (30 if TAG else n_flag) else [])
        if vm or lg: a.wait(vm=vm or None, lg=lg)
        e("s_barrier")
        if u & 1 and u > 1: stamp(bar=True)
        if u + T < 32 and not x_nodma: pending.extend(dma_list(u + T))
    def step(n):
        cur[0] = n
        rds = list(rd_at.get(n, [])); lx = list(ldsx.get(n, [])); vx = list(vmx.get(n, []))
        mf = mfmas(n); k = len(mf)
        lft = (7 - ((n + LA) & 7)) // 2 + 1
        due = bool(pending) and bool(n & 1 or len(pending) > lft)
        both = len(rds) >= 2 and (due or vx or len(rds) > 2 or ready(2, True) or len(ready(2)) >= 2 or not ready(1))
        for gi, ins in enumerate(mf):
            e(ins); mf_pos[g0[n] + gi] = now()
            used = 0; nfree = 0
            if gi == k - 1 and n < LAST:
                a.wait(lg=f"F{n+1}"); nfree += 1
            if gi == 0 and n in waits:
                a.wait(lg=waits[n]); nfree += 1
            if gi == 0 and n in sync_step:
                unit_sync(sync_step[n]); nfree += 2
            if gi < 2 and pending and pending[0][1] and (gi == 0 or not due):
                pre = pending[0][1]
                c = len(pre) if due else 1
                for p in pre[:c]: e(p); nfree += 1
                del pre[:c]
            used += max(0, nfree - 1)
            if gi < 2:
                c = (len(rds) + 1) // 2 if len(rds) > 2 and gi == 0 else (len(rds) if both or gi == 1 else 1)
                for x in rds[:c]: a.lds(*x); used += 1
                del rds[:c]
            if lx and gi >= 1:
                a.lds(*lx.pop(0)); used += 1
            if gi == 1 and due and pending and not pending[0][1]:
                dma_emit(pending.pop(0)); used += 2
            elif vx and gi >= 1:
                a.vmem(*vx.pop(0)); used += 2
            elif used < 2 and take(2, True): used += 2
            while used < 2 and left:
                if take(3): used += 2
                elif used == 0 and take(2): used += 2
                elif take(1): used += 1
                else: break
            while left and overdue(n, gi):
                if not (take(3) or take(1) or take(2) or take(2, True)): break
            late = [items[i] for i in left if items[i]["dl"] <= g0[n] + gi]
            assert not late, (n, gi, late[:3])
        assert not lx and not vx and not rds, n

    for s in range(8):
        for m in range(3):
            a.lds(f"ds_read_b128 {ar(Q(m, s))}, v{35 + (s & 3)} offset:{m*8192 + 256*(s >> 2)}", "Qf")
        if s < LA: a.lds(*rd_list(s)[0])
        if pending and s & 1: dma_emit(pending.pop(0))
    a.wait(lg="all")
    stamp()
    for n in range(128):
        if n % 8 == 0: a.c(f"unit {n >> 3}")
        step(n)
    assert not left
    a.c("row max over the last tile, reference check")
    stamp()
    e("s_nop 6")
    for m in range(3):
        e(f"v_max3_f32 v{vR[m]}, v{vR[m]}, v{S(15,m,0)}, v{S(15,m,1)}"); e(f"v_max3_f32 v{vR[m]}, v{vR[m]}, v{S(15,m,2)}, v{S(15,m,3)}")
    for tx in chk_text(7):
        for ln in tx.split("\n"): a.lines.append(ln if ln.endswith(":") else "    " + ln.strip())
    k0 = len(items)
    p_items(7, [[], [], []], [g0[first_use[7]] + m - 3 for m in range(3)])
    release(k0)

    fo = [36, 38, 62]; fs = [37, 39, 63]; fb = [40, 41, 42]
    tags = [43, 47] + ([G(g) + 3 for g in range(8)] if TAG else [])
    def tag_check():
        for (op, d) in (("v_max3_u32", 62), ("v_min3_u32", 63)):
            e(f"{op} v{d}, v{vNon}, v{tags[0]}, v{tags[1]}")
            for k in range(2, len(tags), 2): e(f"{op} v{d}, v{d}, v{tags[k]}, v{tags[k+1]}")
        e("v_cmp_ne_u32 vcc, v62, v63")
    def check():
        a.c("partner's partial sums: tags, combination weights")
        a.wait(vm="rc7" if TAG else "rstat", lg="B1")
        stamp()
        tag_check()
        e("s_cbranch_vccnz L_retry")
        a.label("L_got")
        stamp()
        if not TAG:
            for op in rdata: a.vmem(*op)
        k0 = len(items)
        for m in range(3):
            i0 = add(f"v_max_f32_e64 v{fo[m]}, v{28+m}, v{40+m}", 1)
            i1 = add(f"v_sub_f32_e64 v{fs[m]}, v{28+m}, v{fo[m]}", 1, [i0])
            i2 = add(f"v_sub_f32_e64 v{fb[m]}, v{40+m}, v{fo[m]}", 1, [i0])
            i1 = add(f"v_exp_f32_e64 v{fs[m]}, v{fs[m]}", 2, [i1])
            i2 = add(f"v_exp_f32_e64 v{fb[m]}, v{fb[m]}", 2, [i2])
            i3 = add(f"v_mul_f32_e64 v{fo[m]}, v{fs[m]}, v{32+m}", 1, [i1, i2])
            i3 = add(f"v_fma_f32 v{fo[m]}, v{fb[m]}, v{44+m}, v{fo[m]}", 1, [i3])
            i3 = add(f"v_rcp_f32_e64 v{44+m}, v{fo[m]}", 2, [i3])
            i4 = add(f"v_mul_f32_e64 v{fs[m]}, v{fs[m]}, v{44+m}", 1, [i3])
            add(f"v_mul_f32_e64 v{fb[m]}, v{fb[m]}, v{44+m}", 1, [i3])
            i5 = add(f"v_mul_f32_e64 v{fo[m]}, v{fs[m]}, v{phi_o[m]}", 1, [i4])
            i6 = add(f"v_mul_f32_e64 v{fs[m]}, v{fs[m]}, v{phi_s[m]}", 1, [i5])
            for jq in range(4):
                for h in (0, 2): late.append((m, jq, h))
        release(k0)
    late = []
    for n in range(128, 256):
        if n % 8 == 0: a.c(f"unit {n >> 3}")
        if n == 148: send_items()
        step(n)
        if n == 178:
            e(f"v_cmp_eq_u32 vcc, 0, v{vNon}"); e("s_cbranch_vccnz L_nonce")
            a.label("L_havenonce")
        if n == 192: stamp()
        if n == send_dl: a.c("partial sums sent"); stamp()
        if n == n_chk: check()
    assert not pending
    a.c("final combine")
    stamp()
    cur[0] = 256
    while left:
        if not (take(1) or take(2)): e("s_nop 0")
    e(f"s_mul_i32 s38, {sMh}, {48*512}"); e(f"s_add_u32 {sRow}, {sRow}, s38"); e(f"s_add_u32 {sRow}, {sRow}, {sOwn}")
    order = [0, 2, 4, 1, 3, 5] if TAG else range(6)
    def own_part(i):
        m, p = msgs[i]; fp = vr(fo[m], 2)
        for jj in range(2):
            o = B1(2*p + jj, m)
            for h in (0, 2): e(f"v_pk_mul_f32 {vr(o + h, 2)}, {vr(o + h, 2)}, {fp} op_sel:[0,1] op_sel_hi:[1,1]")
        for jj in range(2):
            o = B1(2*p + jj, m)
            for h in (0, 2): e(f"v_pk_fma_f32 {vr(o + h, 2)}, {vr(OV(2*p + jj, m) + h, 2)}, {fp}, {vr(o + h, 2)} op_sel_hi:[1,0,1]")
    if not TAG:
        for i in (0, 2, 4, 1, 3, 5): own_part(i)
    for i in order:
        m, p = msgs[i]
        if TAG: own_part(i)
        else: a.wait(vm=f"rc{i}")
        if i == 0 and not TAG: stamp()
        u0 = [G(8 + 2 * (i & 1)), G(9 + 2 * (i & 1))] if TAG else [PK(2 * (i & 1)), PK(2 * (i & 1) + 1)]
        for jj in range(2):
            for h in range(2):
                t = 4 * i + 2 * jj + h
                src = G(t // 3) + t % 3 if TAG else RC(i) + (t & 3)
                e(f"v_lshlrev_b32 v{u0[jj] + 2*h}, 16, v{src}"); e(f"v_and_b32 v{u0[jj] + 2*h + 1}, {sHi}, v{src}")
        bp, hi = pair(fb[m])
        for jj in range(2):
            o = B1(2*p + jj, m)
            for h in (0, 2): e(f"v_pk_fma_f32 {vr(o + h, 2)}, {vr(u0[jj] + h, 2)}, {bp}, {vr(o + h, 2)} op_sel:[0,{hi},0] op_sel_hi:[1,{hi},1]")
        x = OV(2*p, m)
        for jj in range(2):
            o = B1(2*p + jj, m)
            e(f"v_cvt_pk_bf16_f32 v{x + 2*jj}, v{o}, v{o+1}"); e(f"v_cvt_pk_bf16_f32 v{x + 2*jj + 1}, v{o+2}, v{o+3}")
        e(f"s_add_u32 s38, {sRow}, {8192*m}")
        e("s_nop 0")
        e(f"v_permlane32_swap_b32 v{x}, v{x+2}"); e(f"v_permlane32_swap_b32 v{x+1}, v{x+3}")
        e("s_nop 0")
        e(f"v_permlane16_swap_b32 v{x}, v{x+2}"); e(f"v_permlane16_swap_b32 v{x+1}, v{x+3}")
        a.vmem(f"buffer_store_dwordx4 {vr(x)}, v{vOut}, {sO}, s38 offen offset:{64*p} {opol}", "out")
    if tl:
        stamp()
        e("s_waitcnt vmcnt(0)")
        stamp()
        e("s_waitcnt lgkmcnt(0)")
        e("s_lshl_b32 s38, s2, 2"); e("s_add_u32 s38, s38, s3"); e("s_lshl_b32 s38, s38, 6"); e("s_add_u32 s38, s38, 0x1010000")
        e("v_mov_b32 v8, s38")
        for k in tls[:16]:
            e(f"v_mov_b32 v4, s{64+2*k}")
            e(f"global_store_dword v8, v4, s[58:59] offset:{4*k}")
    if spin:
        e("s_waitcnt vmcnt(0)")
        a.label("L_spin")
        e("s_memrealtime s[44:45]"); e("s_waitcnt lgkmcnt(0)")
        e("s_sub_u32 s44, s44, s40"); e(f"s_cmp_lt_u32 s44, {spin*100}"); e("s_cbranch_scc1 L_spin")
    if stamps:
        e("s_waitcnt vmcnt(0)")
        e("s_memrealtime s[42:43]")
        e("s_lshl_b32 s38, s2, 2"); e("s_add_u32 s38, s38, s3"); e("s_lshl_b32 s38, s38, 4"); e("s_add_u32 s38, s38, 0x1000000")
        e("s_waitcnt lgkmcnt(0)")
        e("v_mov_b32 v4, s40"); e("v_mov_b32 v5, s41"); e("v_mov_b32 v6, s42"); e("v_mov_b32 v7, s43"); e("v_mov_b32 v8, s38")
        e("s_mov_b64 exec, 1")
        e("global_store_dwordx4 v8, v[4:7], s[58:59]")
    e("s_endpgm")
    a.c("slow paths: the nonce or the partner's data was not there yet")
    a.label("L_nonce")
    e("s_mov_b32 s39, 0x100000")
    a.label("L_nonce2")
    e(f"global_load_dword v{vNon}, v{vDbg}, {sDbg} sc1")
    e("s_sub_u32 s39, s39, 1"); e("s_cmp_eq_u32 s39, 0")
    e("s_waitcnt vmcnt(0)")
    e("s_cbranch_scc1 L_havenonce")
    e(f"v_cmp_eq_u32 vcc, 0, v{vNon}"); e("s_cbranch_vccnz L_nonce2")
    e("s_branch L_havenonce")
    a.label("L_retry")
    e("s_mov_b32 s39, 0x80000")
    a.label("L_retry2")
    for op, _ in rstat + (rdata if TAG else []): e(op)
    e("s_sub_u32 s39, s39, 1"); e("s_cmp_eq_u32 s39, 0")
    e("s_waitcnt vmcnt(0)")
    e("s_cbranch_scc1 L_got")
    tag_check()
    e("s_cbranch_vccnz L_retry2")
    e("s_branch L_got")
    a.c("slow path: raise the softmax reference to the running max and rescale the finished P tiles")
    for kp in range(1, 8):
        a.label(f"L_bump{kp}")
        e(f"s_mov_b32 s39, {kp}")
        if kp < 7: e("s_branch L_bump")
    a.label("L_bump")
    for m in range(3):
        e(f"v_mov_b32 v32, v{vR[m]}"); e(f"v_mov_b32 v33, v{vR[m]}"); e("s_nop 1")
        e("v_permlane32_swap_b32 v32, v33"); e("v_max_f32 v32, v32, v33"); e("v_mov_b32 v33, v32"); e("s_nop 1")
        e("v_permlane16_swap_b32 v32, v33"); e("v_max_f32 v32, v32, v33")
        e(f"v_mul_f32 v32, {sC}, v32"); e("v_ceil_f32 v32, v32")
        e(f"v_sub_f32 v{28+m}, v{vM[m]}, v32"); e(f"v_mov_b32 v{vM[m]}, v32"); e(f"v_exp_f32 v{28+m}, v{28+m}")
    for kp in range(1, 7):
        e(f"s_cmp_eq_u32 s39, {kp}"); e(f"s_cbranch_scc1 L_fix{kp-1}")
    for kp in range(6, -1, -1):
        a.label(f"L_fix{kp}")
        for m in range(3):
            for r in range(4):
                x = S(2*kp, m, r)
                e(f"v_lshlrev_b32 v32, 16, v{x}"); e(f"v_and_b32 v33, {sHi}, v{x}")
                e(f"v_mul_f32 v32, v32, v{28+m}"); e(f"v_mul_f32 v33, v33, v{28+m}")
                e(f"v_cvt_pk_bf16_f32 v{x}, v32, v33")
    e("s_nop 1")
    for kp in range(1, 7):
        e(f"s_cmp_eq_u32 s39, {kp}"); e(f"s_cbranch_scc1 L_back{kp}")
    e("s_branch L_back7")
    a.label("L_end")
    e("s_endpgm")
    return kernel_file(a.text(), notes=NOTES, sgpr=100 if tl else 64)

def emit(variants, tl_only=False):
    names = []
    for n, kw in variants.items():
        src = gen(**kw)
        L = src.split("\n")
        for b in hazard.check(L): print("HAZARD", n, b)
        ks = [next(i for i, x in enumerate(L) if key in x) for key in ("; unit 0", "row max over", "; unit 16", "; unit 24", "final combine", "slow paths")]
        print(n, "est cycles: pro", hazard.estimate(L[:ks[0]]), "ph1", hazard.estimate(L[ks[0]:ks[1]]), "bnd", hazard.estimate(L[ks[1]:ks[2]]),
              "2a", hazard.estimate(L[ks[2]:ks[3]]), "2b", hazard.estimate(L[ks[3]:ks[4]]), "tail", hazard.estimate(L[ks[4]:ks[5]]))
        if not tl_only:
            open(f"cdna_kernels/{n}.s", "w").write(src)
            build_co(gen(stamps=True, **kw), f"bench/{n}")
        build_co(gen(stamps=True, tl=True, **kw), f"bench/{n}_tl")
        build_co(gen(stamps=True, tl=True, tlb=True, **kw), f"bench/{n}_tb")
        names.append(n)
    for sfx in ("", "_tl", "_tb"): print(" ".join(n + sfx + ".co" for n in names))
    print(str(["bench/host"] + [f"bench/{n}{sfx}.co" for n in names for sfx in (("_tl", "_tb") if tl_only else ("", "_tl", "_tb"))]).replace("'", '"'))
    print(str([f"cdna_kernels/{n}.s" for n in names]).replace("'", '"'))

if __name__ == "__main__":
    emit({"f1": {}, "f1_def": dict(pol=""), "f1_t3": dict(T=3), "f1_p2": dict(pro=2), "f1_qnt": dict(qpol="nt"), "f1_osc1": dict(opol="sc1")})
```

```python
import re
import hazard

FLEX = ("v_exp_f32", "v_mul_f32", "v_max_f32", "v_mov_b32", "v_sub_f32", "v_add_f32", "v_ceil_f32", "v_rcp_f32", "v_xor_b32", "v_lshlrev_b32", "v_and_b32")
INL = re.compile(r"^(-?\d+|0x[0-9a-fA-F]+)$")

def literal(tok):
    if not INL.match(tok): return False
    v = int(tok, 0)
    return not -16 <= v <= 64

def size(p):
    op, s = p["op"], p["text"]
    toks = [t.strip() for t in s.partition(" ")[2].split(",")]
    if p["kind"] in ("mfma", "ds", "vmem") or op.startswith(("buffer_", "s_load", "s_mem")): return 8
    if op.startswith("s_"):
        return 8 if not op.startswith(("s_waitcnt", "s_nop", "s_cbranch", "s_branch", "s_getreg")) and any(literal(t) for t in toks) else 4
    if op.endswith("_e64") or op.startswith(("v_fma_f32", "v_max3", "v_min3", "v_cvt_pk", "v_pk_", "v_accvgpr", "v_lshl_add", "v_add3")): return 8
    return 8 if any(literal(t) or "L_" in t for t in toks) else 4

def flex(p):
    base = p["op"].replace("_e64", "").replace("_e32", "")
    if base not in FLEX: return False
    toks = [t.strip() for t in p["text"].partition(" ")[2].split(",")]
    if any(literal(t) or t.startswith("-") for t in toks): return False
    return len(toks) == 2 or toks[2].startswith("v")

def slots(p):
    return 2 if p["kind"] in ("trans", "vmem") else p["states"]

def align(lines, start, stop, nops=True):
    off = sum(size(p) for p in map(hazard.parse, lines[:start]) if p)
    out = lines[:start]
    i = start
    while i < stop:
        j = i + 1
        while j < stop and not lines[j].strip().startswith("v_mfma"): j += 1
        seg = lines[i:j]
        ps = [hazard.parse(x) for x in seg]
        idx = [k for k, p in enumerate(ps) if p]
        body = [k for k in idx if ps[k]["kind"] != "mfma"]
        used = sum(slots(ps[k]) for k in body) - (1 if body and ps[body[0]]["kind"] in ("salu", "nop") else 0)
        o = off
        k0 = 0
        for n, k in enumerate(idx):
            p = ps[k]
            if flex(p):
                run = 0
                for k2 in idx[n + 1:]:
                    if size(ps[k2]) == 8 or flex(ps[k2]): break
                    run += 4
                base = p["op"].replace("_e64", "").replace("_e32", "")
                want4 = (o + 4 + run) % 8 == 0
                seg[k] = seg[k].replace(p["op"], base + ("_e32" if want4 else "_e64"), 1)
                o += 4 if want4 else 8
            else:
                sz = size(p)
                if nops and sz == 8 and o % 8 and used < 2 and p["kind"] != "mfma" and n and ps[idx[n - 1]]["kind"] == "salu":
                    seg[k] = "    s_nop 0\n" + seg[k]; o += 4; used += 1
                o += sz
        if nops and o % 8 and used < 2 and j < stop:
            seg.append("    s_nop 0"); o += 4
        off = o
        out += "\n".join(seg).split("\n")
        i = j
    return out + lines[stop:]
```

```python
import sys, struct
from asmlib import *
import hazard, align

C_SCALE = 0.0625 * 1.4426950408889634
def f32bits(x): return struct.unpack("<I", struct.pack("<f", x))[0]

RING = 81920
SLOT = 8192
LAST = 255
WSTAT = 0x800000

NOTES = """; GQA attention. Workgroup = 96 query rows (one q head) x 512 keys, wave = 48 rows x 256 keys.
; K/V tiles go by LDS-DMA into two rings shared by wave pairs. Partial outputs are merged between sibling
; over as bf16 partial sums parked in the partner's output rows (overwritten by its final stores), announced
; by (max, sum) words in d_ws tagged with a per-launch nonce from d_debug and the sender's XCD id; different
"""
THR = 16.0

VSEQ = [(3, 0), (2, 0), (3, 1), (2, 1), (3, 2), (3, 3), (2, 2), (2, 3)] + [(1, k) for k in range(4)] + [(0, k) for k in range(4)]

def gen(pol="nt", qpol="", opol="", W=7, LA=6, LA2=2, NS=6, T=4, pro=3, stamps=False, tl=False, tlb=False, clk=False, spin=0,
        xst="sc1", xld="sc1", send_dl=202, mode="flag", n_flag=28, n_recv=236, n_poll=240, n_chk=247, swaps=True, x_nodma=False, thr=THR, dual=False, k0=7, pre_at=(90, 106, 114, 140), non_at=98, rate=2, qdma=True, tramp=(), repf=(), pf0=True, ed=0, force_slow=False, fld="nt", fst="", n_fill=0, late3=False, sst=(), even=False, wpace=1.0, rpace=2, xbar=0, x2=False, x_nosend=False, x_norecv=False, x_nolds=False, one_swap=False, nv=0, vat=(), plan=None, l1=False, n_wr=130, x_fakeP=False, w64=False, x_linst=False, ltr=False, t64=False, tord=0, alg=False, prio=False, gb_shift=0):
    a = Asm(); e = a.e
    STAT = NS * SLOT
    SOFF = min(24576, RING - STAT - 1024)
    vKd = [1, 2, 3, 4]; vKr = [5, 6, 7, 8]; vVr = [9, 10, 11, 12]; vR = [13, 14, 15]; vM = [16, 17, 18]; vVd = 19
    TAG = mode == "tag"; OUT = mode == "out"
    if OUT and not x2: non_at = 40
    k0 = min(k0, 7 - ed)
    if plan is None: plan = {p: [p - ed] for p in range(7) if 0 <= p - ed < k0}
    k0 = sum(len(v) for v in plan.values())
    chk_ids = [v[0] for p, v in sorted(plan.items()) if v[0]] + [k0]
    l_at = {}
    if l1:
        for p, v in plan.items():
            for i, kp in enumerate(v):
                if p < 6:
                    for m in range(3): l_at[16 * p + 33 + 4 * i + m] = (kp, m)
    l_early = {x for x in l_at.values()}
    vOnes = 20; vNon = 24; vDum = 25; vZero = 26; vLane16 = 27
    vDbg, vSt, vSs, vWr, vSb, vQ16, vOut = 52, 53, 54, 55, 56, 57, 58
    def S(kt, m, r=0): return 64 + (kt * 3 + m) * 4 + r
    def Z(i): return S(2 * (i // 3) + 1, i % 3)
    def vr(b, n=4): return f"v[{b}:{b+n-1}]"
    def ar(b, n=4): return f"a[{b}:{b+n-1}]"
    def pair(r): return (vr(r & ~1, 2), r & 1)
    def Q(m, s): return (m * 8 + s) * 4
    def OA(x, jq, m): return ((4 * (x >> 1) + jq) * 3 + m) * 4
    def OV(jq, m): return Z(jq * 3 + m)
    def B3(jq, m): return Z(12 + jq * 3 + m)
    def B1(jq, m): return S(2 * jq, m)
    msgs = [(m, p) for m in range(3) for p in range(2)]
    dead = [B3(2 * p + jj, m) for (m, p) in msgs for jj in range(2)]
    def G(g): return dead[g]
    def Lr(m): return 192 + 4 * m
    def F(n): return 204 + 4 * (n % W)
    sQ, sK, sV, sO, sW = "s[12:15]", "s[16:19]", "s[20:23]", "s[24:27]", "s[48:51]"
    sKb, sDst, sRing, sT, sC, sRow, sOwn = "s28", "s29", "s30", "s31", "s32", "s33", "s34"
    sMh, sKq, sGrp, sMem, sIn, sPin, sSib, sLow = "s35", "s46", "s47", "s52", "s53", "s54", "s55", "s44"
    sVb = ["s60", "s61", "s62", "s63"]
    sIn2, sPin2, sInS, sPinS, sHi, sThr = "s4", "s5", "s6", "s7", "s8", "s9"
    sDbg = "s[56:57]"
    sXcc, sDiff, sOo, sPo, sTx = "s10", "s11", "s42", "s45", "s43"
    vXa, vId = 59, 25
    MF = "v_mfma_f32_16x16x32_bf16"
    tls = []
    def stamp(bar=False, force=False):
        if tl and ((bar == tlb and not sst) or force):
            k = len(tls); tls.append(k)
            e(f"{'s_memtime' if clk else 's_memrealtime'} s[{64+2*k}:{65+2*k}]")

    e("s_cmp_ge_u32 s2, 256"); e("s_cbranch_scc1 L_end")
    e("s_memrealtime s[40:41]")
    if tl and clk: e("s_memtime s[64:65]")
    e("s_load_dwordx4 s[4:7], s[0:1], 0"); e("s_load_dwordx4 s[8:11], s[0:1], 16"); e("s_load_dwordx4 s[56:59], s[0:1], 32")
    a.c("pull the kernel's code into L2")
    e("s_getpc_b64 s[36:37]")
    e("v_lshlrev_b32 v28, 7, v0")
    e("v_min_u32 v28, L_nonce - L_pc, v28")
    a.label("L_pc")
    if pf0: a.vmem(f"global_load_dword v{vDum}, v28, s[36:37]", "code")
    e("v_lshrrev_b32 v30, 6, v0"); e("v_and_b32 v0, 63, v0")
    e("v_readfirstlane_b32 s3, v30")
    a.c("workgroup -> (kv group, q head of the group, key half); ids equal mod 8 work on one group")
    e(f"s_and_b32 {sGrp}, s2, 7"); e("s_lshr_b32 s39, s2, 5"); e("s_lshl_b32 s39, s39, 3"); e(f"s_add_u32 {sGrp}, {sGrp}, s39")
    e(f"s_bfe_u32 {sMem}, s2, 0x20003")
    e(f"s_and_b32 s39, {sMem}, 1"); e(f"s_lshl_b32 s38, {sGrp}, 1"); e("s_add_u32 s38, s38, s39"); e(f"s_mul_i32 {sRow}, s38, {96*512}")
    e(f"s_lshr_b32 s45, {sMem}, 1"); e(f"s_lshl_b32 s43, {sGrp}, 19"); e("s_lshl_b32 s38, s45, 18"); e("s_add_u32 s43, s43, s38")
    e(f"s_and_b32 {sMh}, s3, 1"); e(f"s_lshr_b32 {sKq}, s3, 1")
    a.c("K unit u of ring kq = 16-key tile 2u+kq of the key half; wave mh loads rows 8*mh..")
    e(f"s_lshl_b32 s38, {sKq}, 13"); e("s_add_u32 s43, s43, s38"); e(f"s_lshl_b32 s38, {sMh}, 12"); e(f"s_add_u32 {sKb}, s43, s38")
    e(f"s_mul_i32 {sRing}, {sKq}, {RING}"); e(f"s_add_u32 {sDst}, {sRing}, s38")
    a.c("K / Q DMA source offsets")
    e("v_lshrrev_b32 v30, 5, v0"); e("v_and_b32 v31, 31, v0"); e("v_lshlrev_b32 v32, 1, v30"); e("v_xor_b32 v31, v31, v32")
    e("v_lshlrev_b32 v31, 4, v31"); e(f"v_lshl_add_u32 v{vKd[0]}, v30, 9, v31")
    for n in range(1, 4): e(f"v_xor_b32 v{vKd[n]}, {64*n}, v{vKd[0]}")
    e(f"s_lshl_b32 s38, {sMh}, 7")
    e(f"v_xor_b32 v33, s38, v{vKd[0]}"); e(f"v_xor_b32 v34, s38, v{vKd[1]}")
    e("s_lshl_b32 s39, s3, 11")
    e(f"s_add_u32 {sT}, {sRow}, s39")
    e("s_waitcnt lgkmcnt(0)")
    if tl and not dual:
        tls.append(0)
        if not clk: e("s_mov_b32 s64, s40")
    e("s_mov_b32 s12, s4"); e("s_mov_b32 s13, s5"); e("s_mov_b32 s14, 6291456"); e("s_mov_b32 s15, 0x20000")
    e("s_mov_b32 s16, s6"); e("s_mov_b32 s17, s7"); e("s_mov_b32 s18, 0x2000000"); e("s_mov_b32 s19, 0x20000")
    for t in range(6):
        e(f"s_add_u32 m0, s39, {(t // 3)*RING + STAT + (t % 3)*8192}")
        if t: e(f"s_add_u32 {sT}, {sT}, 8192")
        else: e("s_nop 0")
        a.vmem(f"buffer_load_dwordx4 v33, {sQ}, {sT} offen {qpol} lds", "Q")
        a.vmem(f"buffer_load_dwordx4 v34, {sQ}, {sT} offen offset:1024 {qpol} lds", "Q")

    def ridx(u): return u if u < 16 else u - nv
    def slot_of(u): return STAT + (u - 16) * SLOT if 16 <= u < 16 + nv else (ridx(u) % NS) * SLOT
    def dma_list(u):
        slot = slot_of(u)
        out = []
        for n in range(4):
            off = f" offset:{1024*n}" if n else ""
            pre = [f"s_add_u32 m0, {sDst}, {slot}"] if n == 0 else []
            if u < 16:
                if n == 0: pre.append(f"s_add_u32 {sT}, {sKb}, {u*16384}")
                ins = f"buffer_load_dwordx4 v{vKd[n]}, {sK}, {sT} offen{off} {pol} lds"
            else:
                x, kpp = VSEQ[u - 16]
                pre.append(f"s_add_u32 {sT}, {sVb[x]}, {kpp*65536 + (0, 3072, 14336, 17408)[n]}")
                ins = f"buffer_load_dwordx4 v{vVd}, {sV}, {sT} offen{off} {pol} lds"
            out.append([f"U{u}", pre, ins])
        return out
    def dma_emit(item):
        tag, pre, ins = item
        for p in pre: e(p)
        a.vmem(ins, tag)
    early = [it for u in range(T) for it in dma_list(u)]
    for it in early[:4*pro]: dma_emit(it)
    e("s_mov_b32 s20, s8"); e("s_mov_b32 s21, s9"); e("s_mov_b32 s22, 0x2000000"); e("s_mov_b32 s23, 0x20000")
    e("s_mov_b32 s24, s10"); e("s_mov_b32 s25, s11"); e("s_mov_b32 s26, 6291456"); e("s_mov_b32 s27, 0x20000")
    e("s_mov_b32 s48, s58"); e("s_mov_b32 s49, s59"); e(f"s_mov_b32 s50, {WSTAT + 1024*512}"); e("s_mov_b32 s51, 0x20000")
    e(f"s_mov_b32 {sC}, {hex(f32bits(C_SCALE))}"); e(f"s_mov_b32 {sLow}, 0xff7fffff"); e(f"s_mov_b32 {sHi}, 0xffff0000"); e(f"s_mov_b32 {sThr}, {hex(f32bits(thr))}")
    e(f"s_lshl_b32 {sOwn}, s45, 1"); e(f"s_add_u32 {sOwn}, {sOwn}, {sKq}"); e(f"s_lshl_b32 {sOwn}, {sOwn}, 7")
    e(f"s_lshl_b32 s38, {sMh}, 15"); e("s_add_u32 s43, s43, s38"); e(f"s_add_u32 {sVb[0]}, s43, {sOwn}")
    for x in range(1, 4): e(f"s_xor_b32 {sVb[x]}, {sVb[0]}, {128*x}")
    e("s_lshl_b32 s38, s2, 2"); e("s_add_u32 s38, s38, s3"); e(f"s_lshl_b32 {sIn}, s38, 13"); e(f"s_xor_b32 {sPin}, {sIn}, {64 << 13}")
    e(f"s_add_u32 {sIn2}, {sIn}, 4096"); e(f"s_add_u32 {sPin2}, {sPin}, 4096")
    e("s_lshl_b32 s38, s38, 9"); e(f"s_add_u32 {sInS}, s38, {WSTAT}"); e(f"s_xor_b32 {sPinS}, {sInS}, {64 << 9}")
    e(f"s_mul_i32 s38, {sMh}, {48*512}"); e(f"s_add_u32 {sOo}, {sRow}, s38"); e(f"s_add_u32 {sOo}, {sOo}, {sOwn}")
    if OUT:
        e(f"s_xor_b32 {sPo}, {sOo}, 256")
        e(f"s_getreg_b32 {sXcc}, hwreg(HW_REG_XCC_ID, 0, 4)"); e(f"s_lshl_b32 {sXcc}, {sXcc}, 28")
        e(f"v_lshrrev_b32 v39, 3, v0"); e("v_and_b32 v40, 7, v0"); e("v_lshlrev_b32 v40, 4, v40"); e(f"v_lshl_add_u32 v{vXa}, v39, 9, v40")
    a.c("the group's first workgroup publishes the launch nonce")
    e(f"s_lshl_b32 s38, {sGrp}, 2"); e(f"v_mov_b32 v{vZero}, 0"); e(f"v_mov_b32 v{vDbg}, s38")
    e(f"s_or_b32 s38, {sMem}, s3"); e("s_cmp_eq_u32 s38, 0"); e("s_cbranch_scc0 L_nopub")
    e("s_or_b32 s38, s40, 1"); e("v_mov_b32 v46, s38")
    e(f"global_store_dword v{vDbg}, v46, {sDbg} sc1")
    a.label("L_nopub")
    a.c("K fragment read addresses (v35..v38: the same pattern for the Q tiles)")
    e("v_and_b32 v30, 15, v0"); e("v_lshrrev_b32 v31, 4, v0"); e("v_and_b32 v32, 7, v0"); e("v_lshlrev_b32 v32, 1, v32")
    e("v_xor_b32 v32, v32, v31"); e("v_lshlrev_b32 v32, 4, v32"); e("v_lshl_add_u32 v35, v30, 9, v32")
    for s in range(1, 4): e(f"v_xor_b32 v{35+s}, {64*s}, v35")
    e(f"s_mul_i32 s38, {sMh}, {RING}"); e(f"s_add_u32 s38, s38, {STAT}")
    for s in range(4):
        e(f"v_add_u32 v{vKr[s]}, {sRing}, v{35+s}")
        e(f"v_add_u32 v{35+s}, s38, v{35+s}")
    a.c("exchange-area and output addresses")
    e(f"v_lshlrev_b32 v{vQ16}, 4, v30"); e(f"v_lshlrev_b32 v{vLane16}, 4, v0")
    if one_swap:
        e("v_lshrrev_b32 v39, 1, v31"); e("v_and_b32 v40, 1, v31"); e("v_lshlrev_b32 v40, 5, v40"); e(f"v_lshl_add_u32 v{vOut}, v39, 4, v40")
    else: e(f"v_lshlrev_b32 v{vOut}, 4, v31")
    e(f"v_lshl_add_u32 v{vOut}, v30, 9, v{vOut}")
    e(f"s_mul_i32 s38, {sMh}, 12288"); e(f"s_add_u32 s38, s38, {STAT}"); e(f"s_add_u32 s39, s38, {sRing}")
    e(f"v_add_u32 v{vWr}, s39, v{vLane16}")
    e(f"s_xor_b32 {sSib}, {sKq}, 1"); e(f"s_mul_i32 {sSib}, {sSib}, {RING}"); e(f"s_add_u32 s39, s38, {sSib}")
    e(f"v_add_u32 v{vSb}, s39, v{vLane16}")
    e(f"s_lshl_b32 s38, {sMh}, 9"); e(f"s_add_u32 s38, s38, {STAT + SOFF}")
    e(f"s_add_u32 s39, s38, {sRing}"); e(f"v_add_u32 v{vSt}, s39, v{vQ16}")
    e(f"s_add_u32 s39, s38, {sSib}"); e(f"v_add_u32 v{vSs}, s39, v{vQ16}")
    a.c("V DMA source offset and transposed-read addresses (128-byte rows)")
    e("v_lshrrev_b32 v39, 3, v0"); e("v_and_b32 v40, 6, v39"); e("v_and_b32 v41, 7, v0"); e("v_xor_b32 v40, v40, v41")
    e("v_lshlrev_b32 v40, 4, v40"); e(f"v_lshl_add_u32 v{vVd}, v39, 9, v40")
    e("v_and_b32 v39, 3, v39"); e("v_lshlrev_b32 v39, 5, v39"); e("v_lshrrev_b32 v40, 2, v0"); e("v_and_b32 v41, 3, v0")
    e("v_lshlrev_b32 v41, 3, v41"); e("v_lshl_add_u32 v41, v40, 7, v41"); e(f"v_add_u32 v41, {sRing}, v41")
    for j in range(4):
        e(f"v_xor_b32 v40, {32*j}, v39"); e(f"v_add_u32 v{vVr[j]}, v40, v41")
    for i in range(4): e(f"v_mov_b32 v{vOnes+i}, 0x3f803f80")
    vPg = 43 if False else 63
    if repf: e("s_lshl_b32 s38, s3, 11"); e(f"v_lshlrev_b32 v{vPg}, 3, v{vQ16}"); e(f"v_add_u32 v{vPg}, s38, v{vPg}")
    if n_fill: e(f"v_min_u32 v{vPg}, 47, v0"); e(f"v_lshlrev_b32 v{vPg}, 9, v{vPg}")
    stamp()
    a.wait(vm="U0")
    e("s_barrier")
    stamp()
    nxt = [tramp[0] + 1 if tramp else T + 1]
    pending = [it for u in range(pro, nxt[0]) for it in dma_list(u)]

    def vstep(n):
        u, s = n >> 3, n & 7
        x, kpp = VSEQ[u - 16]
        kl, jq = (s & 1, s >> 1) if u == 31 else (s >> 2, s & 3)
        return x, 2 * kpp + kl, kl, jq
    def rd_list(n):
        u, s = n >> 3, n & 7
        slot = slot_of(u)
        if u < 16: return [(f"ds_read_b128 {ar(F(n))}, v{vKr[s & 3]} offset:{slot + 256*(s >> 2)}", f"F{n}")]
        x, kp, kl, jq = vstep(n)
        o = slot + 4096 * kl
        return [(f"ds_read_b64_tr_b16 {ar(F(n), 2)}, v{vVr[jq]} offset:{o}", f"F{n}"),
                (f"ds_read_b64_tr_b16 {ar(F(n)+2, 2)}, v{vVr[jq]} offset:{o + 2048}", f"F{n}")]
    rd_at = {}
    for r in range(LA, 256):
        n = r - LA
        if r >= 248: n = max(n, 248 - LA2 + max(0, (r - 249) // 2))
        rd_at.setdefault(n, []).extend(rd_list(r))
    def mfmas(n):
        out = []
        if n < 128:
            kt, ss = n >> 3, n & 7
            for m in range(3):
                d = vr(S(kt, m))
                out.append(f"{MF} {d}, {ar(F(n))}, {ar(Q(m, ss))}, {d if ss else 0}")
            if n in l_at:
                kp, m = l_at[n]; d = ar(Lr(m))
                out.append(f"{MF} {d}, {vr(vOnes)}, {vr(S(2*kp, m))}, {d if kp else 0}")
        else:
            x, kp, kl, jq = vstep(n)
            for m in range(3):
                d = ar(OA(x, jq, m)) if x & 1 else vr(OV(jq, m))
                out.append(f"{MF} {d}, {ar(F(n))}, {vr(S(2*kp, m))}, {d if kp else 0}")
            if x == 3 and jq < 3 and (kp, jq) not in l_early:
                d = ar(Lr(jq))
                out.append(f"{MF} {d}, {vr(vOnes)}, {vr(S(2*kp, jq))}, {d if kp else 0}")
        return out
    g0 = [0]
    for n in range(256): g0.append(g0[-1] + len(mfmas(n)))
    first_use = {}; last_write = {}
    for n in range(128, 256):
        x, kp, kl, jq = vstep(n)
        first_use.setdefault(kp, n); last_write[(x, jq)] = n

    items = []
    def add(text, slots, deps=(), after=-1, dl=10**6, gate=0, tag=None, dist=0):
        items.append(dict(t=text, s=slots, deps=list(deps), after=after, dl=dl, gate=gate, tag=tag, dist=dist)); return len(items) - 1
    def pregs(kp, m): return [S(2*kp, m, r) for r in range(4)] + [S(2*kp+1, m, r) for r in range(4)]
    def p_items(kp, deps, dls):
        out = []
        for m in range(3):
            regs = pregs(kp, m); ids = []
            for x in regs:
                i0 = add(f"v_fma_f32 v{x}, v{x}, {sC}, -v{vM[m]}", 1, deps[m], -1, dls[m])
                ids.append(add(f"v_exp_f32_e64 v{x}, v{x}", 2, [i0], -1, dls[m]))
            prev = []
            for i in range(4):
                prev = [add(f"v_cvt_pk_bf16_f32 v{regs[i]}, v{regs[2*i]}, v{regs[2*i+1]}", 1, [ids[2*i], ids[2*i+1]] + prev, -1, dls[m])]
            out += prev
        return out
    def chk_text(kp):
        return [f"v_fma_f32 v{28+m}, v{vR[m]}, {sC}, -v{vM[m]}" for m in range(3)] + ["v_max3_f32 v28, v28, v29, v30",
                f"v_cmp_lt_f32 vcc, {sThr}, v28\n    s_cbranch_vccnz L_bump{kp}\nL_back{kp}:"]
    last_r = [[], [], []]; last_p = []
    for kt in range(15):
        for m in range(3):
            aft = g0[8*kt + 7] + m
            dl = g0[8*kt + 16] - 1
            r0 = sLow if kt == 0 else f"v{vR[m]}"
            i0 = add(f"v_max3_f32 v{vR[m]}, {r0}, v{S(kt,m,0)}, v{S(kt,m,1)}", 1, last_r[m], aft, dl)
            i1 = add(f"v_max3_f32 v{vR[m]}, v{vR[m]}, v{S(kt,m,2)}, v{S(kt,m,3)}", 1, [i0], aft, dl)
            last_r[m] = [i1]
        if kt & 1 and (kt >> 1) in plan:
            kp = plan[kt >> 1][0]
            dl1 = g0[8*kt + 16] - 1
            if kp == 0:
                deps = []
                for m in range(3):
                    t0, t1 = 32 + 2*m, 33 + 2*m
                    i0 = add(f"v_mov_b32_e64 v{t0}, v{vR[m]}", 1, last_r[m], -1, dl1); i1 = add(f"v_mov_b32_e64 v{t1}, v{vR[m]}", 1, last_r[m], -1, dl1)
                    last_r[m] = [i0, i1]
                    i2 = add(f"v_permlane32_swap_b32 v{t0}, v{t1}", 1, [i0, i1], -1, dl1, dist=2)
                    i3 = add(f"v_max_f32_e64 v{t0}, v{t0}, v{t1}", 1, [i2], -1, dl1)
                    i4 = add(f"v_mov_b32_e64 v{t1}, v{t0}", 1, [i3], -1, dl1)
                    i5 = add(f"v_permlane16_swap_b32 v{t0}, v{t1}", 1, [i4], -1, dl1, dist=2)
                    i6 = add(f"v_max_f32_e64 v{t0}, v{t0}, v{t1}", 1, [i5], -1, dl1)
                    i7 = add(f"v_mul_f32_e64 v{t0}, {sC}, v{t0}", 1, [i6], -1, dl1)
                    deps.append([add(f"v_ceil_f32_e64 v{vM[m]}, v{t0}", 1, [i7], -1, dl1)])
            else:
                tx = chk_text(kp)
                ds = [add(tx[m], 1, last_r[m], -1, dl1) for m in range(3)]
                i0 = add(tx[3], 1, ds, -1, dl1)
                ic = add(tx[4], 3, [i0] + last_p, -1, dl1)
                for m in range(3): last_r[m] = [ic]
                deps = [[ic]] * 3
            last_p = [i for kq_ in plan[kt >> 1] for i in p_items(kq_, deps, [g0[8*kt + 24] - 1] * 3)]
    left = list(range(len(items))); done = {}; mf_pos = {}
    def release(k0): left.extend(range(k0, len(items)))
    phi_o = [48, 50, 60]; phi_s = [49, 51, 61]
    def PK(i): return G(2 * i)
    def RC(i): return G(2 * i + 1)
    def send_items():
        k0 = len(items)
        dl = g0[send_dl] - 1; gate = max(193, gb)
        ph = []
        for m in range(3):
            i0 = add(f"v_max_f32_e64 v{28+m}, v{vM[m]}, v{40+m}", 1, [], -1, g0[186], 148)
            i1 = add(f"v_sub_f32_e64 v{phi_o[m]}, v{vM[m]}, v{28+m}", 1, [i0], -1, g0[186], 148)
            i2 = add(f"v_sub_f32_e64 v{phi_s[m]}, v{40+m}, v{28+m}", 1, [i0], -1, g0[186], 148)
            ph.append([add(f"v_exp_f32_e64 v{phi_o[m]}, v{phi_o[m]}", 2, [i1], -1, g0[186], 148),
                       add(f"v_exp_f32_e64 v{phi_s[m]}, v{phi_s[m]}", 2, [i2], -1, g0[186], 148)])
        adds = {}
        for i, (m, p) in enumerate(msgs):
            for jj in range(2):
                jq = 2 * p + jj
                adds[(jq, m)] = []
                for r in range(4):
                    if x_fakeP:
                        adds[(jq, m)] = [add("s_nop 0", 1, [], g0[last_write[(2, jq)]] + m, dl, 192)] * 4 if r == 0 else adds[(jq, m)]
                        continue
                    i0 = add(f"v_mul_f32_e64 v{B3(jq,m)+r}, v{B3(jq,m)+r}, v{phi_s[m]}", 1, [ph[m][1]], -1, dl, ga if i < 3 else gb)
                    adds[(jq, m)].append(add(f"v_fma_f32 v{OV(jq,m)+r}, v{OV(jq,m)+r}, v{phi_o[m]}, v{B3(jq,m)+r}", 1, [i0, ph[m][0]],
                                             g0[last_write[(2, jq)]] + m, dl, 192))
        killer = [adds[(2*p + jj, m)] for (m, p) in msgs for jj in range(2)]
        ng = 8 if TAG else 6
        parts = {g: [add(f"v_mov_b32_e64 v{G(g)+3}, v{vNon}", 1, killer[g], -1, dl, gate)] if TAG else [] for g in range(ng)}
        for t in range(24):
            i, jj, h = t >> 2, (t >> 1) & 1, t & 1
            m, p = msgs[i]; jq = 2 * p + jj
            g, dst, kill = (t // 3, G(t // 3) + t % 3, killer[t // 3]) if TAG else (i, PK(i) + (t & 3), killer[2 * i])
            parts[g].append(add(f"v_cvt_pk_bf16_f32 v{dst}, v{OV(jq,m)+2*h}, v{OV(jq,m)+2*h+1}", 1, adds[(jq, m)][2*h:2*h+2] + kill, -1, dl, 192))
        for g in range(ng):
            if OUT:
                add(f"s_add_u32 {sTx}, {sPo}, {4096*g}\nbuffer_store_dwordx4 {vr(PK(g))}, v{vXa}, {sO}, {sTx} offen {fst}", 2, parts[g], -1, dl, 192, "send")
                continue
            add(f"buffer_store_dwordx4 {vr(G(g) if TAG else PK(g))}, v{vLane16}, {sW}, {sPin if g < 4 else sPin2} offen offset:{1024*(g & 3)} {xst}", 2, parts[g], -1, dl, gate, "send")
        if prio:
            for i, (m, p) in enumerate(msgs):
                for jj in range(2):
                    for k in adds[(2*p + jj, m)]:
                        items[k]["pr"] = i; items[items[k]["deps"][0]]["pr"] = i
                for k in parts[i]: items[k]["pr"] = i
        dl2 = dl if TAG else g0[8 * n_flag - LA] - 1
        st = [add(f"v_mov_b32_e64 v31, v{vNon}", 1, [], -1, dl2, 182), add(f"v_xor_b32_e64 v35, {sXcc}, v{vNon}" if x2 else f"v_mov_b32_e64 v35, v{vNon}", 1, [], -1, dl2, 182)]
        for m in range(3):
            i0 = add(f"v_accvgpr_read_b32 v{32+m}, a{Lr(m)}", 1, [], -1, dl2, 180)
            i0 = add(f"v_mul_f32_e64 v{32+m}, v{32+m}, v{phi_o[m]}", 1, [i0, ph[m][0]], -1, dl2, 180)
            st.append(add(f"v_fma_f32 v{32+m}, v{36+m}, v{phi_s[m]}, v{32+m}", 1, [i0, ph[m][1]], -1, dl2, ga))
        if TAG:
            for op in stat_stores: add(op, 2, st, -1, dl, gate, "send")
        release(k0)
    stat_stores = [f"buffer_store_dwordx4 v[28:31], v{vQ16}, {sW}, {sPinS} offen sc1", f"buffer_store_dwordx4 v[32:35], v{vQ16}, {sW}, {sPinS} offen offset:256 sc1"]
    cnt = [0, 0]
    def now():
        for x in a.lines[cnt[0]:]:
            p = hazard.parse(x)
            if p: cnt[1] += p["states"]
        cnt[0] = len(a.lines)
        return cnt[1]
    cur = [0]
    def ready(slots, mem=False):
        t = now(); out = []
        for i in left:
            it = items[i]
            if it["s"] != slots or bool(it["tag"]) != mem or it["gate"] > cur[0]: continue
            if it["after"] >= 0 and (it["after"] not in mf_pos or t - mf_pos[it["after"]] < 8): continue
            if all(d in done and t - done[d] >= max(it["dist"], 1 if items[d]["s"] == 2 else 0) for d in it["deps"]): out.append(i)
        return out
    def take(slots, mem=False):
        r = ready(slots, mem)
        if not r: return False
        i = min(r, key=lambda k: (items[k]["dl"], items[k].get("pr", 0), k))
        if mem:
            *pre, ins = items[i]["t"].split("\n")
            for p in pre: e(p)
            if x_nosend: ins = f"buffer_load_dword v62, v{vZero}, {sK}, {sKb} offen"
            a.vmem(ins, items[i]["tag"])
        else:
            for ln in items[i]["t"].split("\n"): a.lines.append(ln if ln.endswith(":") else "    " + ln.strip())
        done[i] = now(); left.remove(i); return True

    sync_step = {8*u - LA: u for u in range(1, 31)}; sync_step[248 - LA2] = 31
    ldsx = {}; waits = {}
    def put(n, op):
        if x_nolds and "b128" in op[0]: op = (f"ds_read_b32 v62, v{vSt}", op[1])
        ldsx.setdefault(n, []).append(op)
    def blk(jq, m): return (jq * 3 + m) * 1024
    for (x, n0, tag) in ((3, 175, "W3"), (1, 223, "W1")):
        ops = [(f"ds_write_b128 v{vWr}, {ar(OA(x, jq, m))} offset:{blk(jq, m)}", tag) for jq in range(4) for m in range(3)]
        roomy = late3 if x == 3 else xbar
        blocks = [(jq, m) for jq in range(4) for m in range(3)]
        for k, op in enumerate(ops):
            n = n0 + (int(k * wpace) if roomy else min(k, 10))
            if w64:
                jq, m = blocks[k]
                for h in range(2): put(n, (f"ds_write_b64 v{vWr}, {ar(OA(x, jq, m) + 2*h, 2)} offset:{blk(jq, m) + 8*h}", tag))
            else: put(n, op)
        if x == 3:
            for m in range(3): put(n0 + 5 + m, (f"ds_write_b32 v{vSt}, a{Lr(m)} offset:{256 + 4*m}", tag))
    if x_fakeP:
        for k in range(24):
            ldsx.setdefault(72 + 4 * k, []).append((f"ds_write_b128 v{vWr}, v[64:67] offset:{1024 * (k % 12)}", "fk"))
            ldsx.setdefault(82 + 4 * k, []).append((f"ds_read_b128 a[232:235], v{vSb} offset:{1024 * (k % 12)}", "fk"))
    put(n_wr, (f"ds_write_b96 v{vSt}, v[16:18]", "Wr"))
    put(146, (f"ds_read_b96 v[40:42], v{vSs}", "Rr")); waits[148] = "Rr"
    k = 0
    r3 = 194 if late3 else 186
    put(r3, (f"ds_read_b96 v[36:38], v{vSs} offset:256", "B3a"))
    for (m, p) in msgs:
        for jj in range(2):
            k += 1
            put(r3 + k // rpace, (f"ds_read_b128 {vr(B3(2*p+jj, m))}, v{vSb} offset:{blk(2*p+jj, m)}", "B3a" if k <= 6 else "B3"))
    ga, gb = r3 + 6 // rpace + 1, r3 + 12 // rpace + 1 + gb_shift
    waits[ga] = "B3a"; waits[gb] = "B3"
    k = 0
    for (m, p) in msgs:
        for jj in range(2):
            put(max(240, xbar) + k // 2, (f"ds_read_b128 {vr(B1(2*p+jj, m))}, v{vSb} offset:{blk(2*p+jj, m)}", "B1")); k += 1
    vmx = {non_at: [(f"global_load_dword v{vNon}, v{vDbg}, {sDbg} sc1", "nonce")]}
    if OUT and not x2:
        vmx[76] = [(f"buffer_store_dword v62, v{vZero}, {sW}, {sPin} offen sc1", "idw")]
        vmx[150] = [(f"buffer_load_dword v{vId}, v{vZero}, {sW}, {sIn} offen sc1", "idr")]
    for n, (srd, off) in zip(pre_at, ((sW, sInS), (sW, sIn), (sW, sPin), (sO, sRow))):
        if n and not (OUT and off in (sIn, sPin)): vmx[n] = [(f"buffer_load_dword v{vDum}, v{vZero}, {srd}, {off} offen sc1", "pre")]
    vPf = 59
    if n_fill: vmx.setdefault(n_fill, []).append((f"buffer_load_dword v62, v{vPg}, {sO}, {sPo} offen", "fill"))
    for n in repf:
        vmx.setdefault(n, []).append((f"global_load_dword v{vDum}, v{vPf}, s[36:37]", "code"))
    rstat = [(f"buffer_load_dwordx4 v[40:43], v{vQ16}, {sW}, {sInS} offen sc1", "rstat"),
             (f"buffer_load_dwordx4 v[44:47], v{vQ16}, {sW}, {sInS} offen offset:256 sc1", "rstat")]
    rdata = [(f"buffer_load_dwordx4 {vr(G(g) if TAG else RC(g))}, v{vLane16}, {sW}, {sIn if g < 4 else sIn2} offen offset:{1024*(g & 3)} {xld}", f"rc{g}")
             for g in range(8 if TAG else 6)]
    if OUT:
        rdata = [(f"s_add_u32 {sTx}, {sOo}, {4096*g}\n    buffer_load_dwordx4 {vr(RC(g))}, v{vXa}, {sO}, {sTx} offen {xld}", f"rc{g}") for g in range(6)]
    if TAG:
        for k, op in enumerate(rstat + rdata): vmx.setdefault(n_recv + k // 2, []).append(op)
    else:
        vmx[n_poll] = list(rstat)
        vmx[8 * n_flag - LA] = [(op, "flag") for op in stat_stores]
    def fixed(n):
        u_next = ((n + LA) >> 3) + T
        dma = 2 if ((n & 1 if rate == 2 else 1 <= (n + LA) & 7 <= 4) and u_next < 32 and not x_nodma) else 0
        return len(rd_at.get(n, [])) + len(ldsx.get(n, [])) + dma + 2 * len(vmx.get(n, [])) + (1 if n in sync_step else 0)
    def overdue(n, gi):
        g = g0[n] + gi
        rel = {}
        for i in left:
            it = items[i]
            rel[i] = it["gate"] <= n and (it["after"] < 0 or it["after"] in mf_pos) and all(d in done or rel[d] for d in it["deps"])
        for D in sorted({items[i]["dl"] for i in left if rel[i]}):
            dem = sum(items[i]["s"] for i in left if items[i]["dl"] <= D)
            sup = 2 * max(0, min(D, g0[256]) - g)
            k = n + 1
            while k < 256 and g0[k] <= D: sup -= fixed(k); k += 1
            if dem > sup:
                if not even or extra_used[0] * max(1, D - g) < dem - sup + extra_used[0]: return True
        return False
    extra_used = [0]
    def unit_sync(u):
        while any(it[0] == f"U{u}" for it in pending): dma_emit(pending.pop(0))
        lg = {(n_wr + LA) // 8 + 1: "Wr", 25 if late3 else 24: "W3", 99 if xbar else 30: "W1"}.get(u)
        vm = ([] if x_nodma and u >= nxt[0] else [f"U{u}"]) + (["send"] if u == (30 if TAG else n_flag) else [])
        if vm or lg: a.wait(vm=vm or None, lg=lg)
        if OUT and not x2 and u == n_flag:
            e(f"s_cmp_lg_u32 {sDiff}, 0"); e("s_cbranch_scc1 L_wb")
            a.label("L_wbdone")
        e("s_barrier")
        if dual:
            if tl and tlb and u & 3 == 3:
                k = len(tls); tls.extend([k, k + 1])
                e(f"s_memrealtime s[{64+2*k}:{65+2*k}]"); e(f"s_memtime s[{66+2*k}:{67+2*k}]")
        elif u & 1 and u > 1: stamp(bar=True)
        done_ring = max([ridx(w) for w in range(u - 1) if not 16 <= w < 16 + nv] + [-1])
        here = u if u < 16 else max(15, ridx(u)) if u >= 16 + nv else 15
        while nxt[0] <= 31 and not x_nodma:
            if 16 <= nxt[0] < 16 + nv: nxt[0] = 16 + nv
            if ridx(nxt[0]) > min(done_ring + NS, here + (tramp[u] if u < len(tramp) else T if u < 16 or not nv else 99)): break
            pending.extend(dma_list(nxt[0])); nxt[0] += 1
        if u in vat and not x_nodma: pending.extend(dma_list(16 + vat.index(u)))
    def step(n):
        cur[0] = n
        a.label(f"L_s{n}")
        if n in sst: stamp(force=True)
        if n + 1 in repf:
            e(f"v_add_u32 v{vPf}, L_s{min(255, n + 9)} - L_pc, v{vPg}"); e(f"v_min_u32 v{vPf}, L_nonce - L_pc, v{vPf}")
        rds = list(rd_at.get(n, [])); lx = list(ldsx.get(n, [])); vx = list(vmx.get(n, []))
        mf = mfmas(n); k = len(mf)
        lft = (7 - ((n + LA) & 7)) // 2 + 1
        due = bool(pending) and bool(n & 1 or len(pending) > lft or rate == 1)
        both = len(rds) >= 2 and (due or vx or len(rds) > 2 or ready(2, True) or len(ready(2)) >= 2 or not ready(1))
        for gi, ins in enumerate(mf):
            e(ins); mf_pos[g0[n] + gi] = now()
            used = 0; nfree = 0
            if gi == k - 1 and n < LAST:
                a.wait(lg=f"F{n+1}"); nfree += 1
            if gi == 0 and n in waits:
                a.wait(lg=waits[n]); nfree += 1
            if gi == 0 and xbar and n == xbar:
                a.wait(lg="W1"); e("s_barrier"); nfree += 2
            if gi == 0 and n in sync_step:
                unit_sync(sync_step[n]); nfree += 2
            if gi < 2 and pending and pending[0][1] and (gi == 0 or not due):
                pre = pending[0][1]
                c = len(pre) if due else 1
                for p in pre[:c]: e(p); nfree += 1
                del pre[:c]
            used += max(0, nfree - 1)
            if gi < 2:
                c = (len(rds) + 1) // 2 if len(rds) > 2 and gi == 0 else (len(rds) if both or gi == 1 else 1)
                for x in rds[:c]: a.lds(*x); used += 1
                del rds[:c]
            if lx and gi >= 1:
                for _ in range(1 if gi < k - 1 and len(lx) <= k - gi else (len(lx) + (k - 1 - gi)) // (k - gi)):
                    a.lds(*lx.pop(0)); used += 1
            if gi == 1 and due and pending and not pending[0][1]:
                dma_emit(pending.pop(0)); used += 2
            elif vx and gi >= 1:
                a.vmem(*vx.pop(0)); used += 2
            elif used < 2 and take(2, True): used += 2
            while used < 2 and left:
                if take(3): used += 2
                elif used == 0 and take(2): used += 2
                elif take(1): used += 1
                else: break
            extra_used[0] = 0
            while left and overdue(n, gi):
                if take(3) or take(1): extra_used[0] += 1
                elif take(2) or take(2, True): extra_used[0] += 2
                else: break
            late = [items[i] for i in left if items[i]["dl"] <= g0[n] + gi]
            assert not late, (n, gi, late[:3])
        assert not lx and not vx and not rds, n

    def nonce_check():
        e(f"v_cmp_eq_u32 vcc, 0, v{vNon}"); e("s_cbranch_vccnz L_nonce")
        a.label("L_havenonce")
    for s in range(8):
        for m in range(3):
            a.lds(f"ds_read_b128 {ar(Q(m, s))}, v{35 + (s & 3)} offset:{m*8192 + 256*(s >> 2)}", "Qf")
        if s < LA: a.lds(*rd_list(s)[0])
        if qdma and pending and s & 1: dma_emit(pending.pop(0))
    a.wait(lg="all")
    stamp()
    for n in range(128):
        if n % 8 == 0: a.c(f"unit {n >> 3}")
        step(n)
        if OUT and not x2 and n == 73:
            a.wait(vm="nonce"); nonce_check()
            e(f"v_xor_b32 v62, {sXcc}, v{vNon}")
    assert not left
    a.c("row max over the last tile, reference check")
    stamp()
    e("s_nop 6")
    for m in range(3):
        e(f"v_max3_f32 v{vR[m]}, v{vR[m]}, v{S(15,m,0)}, v{S(15,m,1)}"); e(f"v_max3_f32 v{vR[m]}, v{vR[m]}, v{S(15,m,2)}, v{S(15,m,3)}")
    for tx in chk_text(k0):
        for ln in tx.split("\n"): a.lines.append(ln if ln.endswith(":") else "    " + ln.strip())
    kk = len(items)
    first_use_ov = {jq: min(n for n in range(128, 256) if vstep(n)[0] == 2 and vstep(n)[3] == jq) for jq in range(4)}
    for kp in range(k0, 8):
        p_items(kp, [[], [], []], [g0[min(first_use[kp], first_use_ov.get(kp, 999))] + m - 3 for m in range(3)])
    release(kk)

    fo = [36, 38, 62]; fs = [37, 39, 63]; fb = [40, 41, 42]
    tags = [43, 47] + ([G(g) + 3 for g in range(8)] if TAG else [])
    def tag_check():
        if x2:
            e(f"v_xor_b32 v62, v43, v{vNon}"); e("v_xor_b32 v63, v47, v35"); e("v_or_b32 v62, v62, v63"); e("v_cmp_ne_u32 vcc, 0, v62")
            return
        for (op, d) in (("v_max3_u32", 62), ("v_min3_u32", 63)):
            e(f"{op} v{d}, v{vNon}, v{tags[0]}, v{tags[1]}")
            for k in range(2, len(tags), 2): e(f"{op} v{d}, v{d}, v{tags[k]}, v{tags[k+1]}")
        e("v_cmp_ne_u32 vcc, v62, v63")
    def check():
        a.c("partner's partial sums: tags, combination weights")
        a.wait(vm="rc7" if TAG else "rstat", lg="B1")
        stamp()
        tag_check()
        e("s_branch L_retry" if force_slow and x2 else "s_cbranch_vccnz L_retry")
        a.label("L_got")
        if OUT and not x2:
            e(f"s_cmp_lg_u32 {sDiff}, 0"); e("s_cbranch_scc1 L_inv")
        stamp()
        if not TAG:
            for op in rdata: a.vmem(f"buffer_load_dword v62, v{vZero}, {sK}, {sKb} offen" if x_norecv else op[0].replace(xld, fld) if OUT else op[0], op[1])
            if OUT: a.label("L_invdone")
        k0 = len(items)
        for m in range(3):
            i0 = add(f"v_max_f32_e64 v{fo[m]}, v{28+m}, v{40+m}", 1)
            i1 = add(f"v_sub_f32_e64 v{fs[m]}, v{28+m}, v{fo[m]}", 1, [i0])
            i2 = add(f"v_sub_f32_e64 v{fb[m]}, v{40+m}, v{fo[m]}", 1, [i0])
            i1 = add(f"v_exp_f32_e64 v{fs[m]}, v{fs[m]}", 2, [i1])
            i2 = add(f"v_exp_f32_e64 v{fb[m]}, v{fb[m]}", 2, [i2])
            i3 = add(f"v_mul_f32_e64 v{fo[m]}, v{fs[m]}, v{32+m}", 1, [i1, i2])
            i3 = add(f"v_fma_f32 v{fo[m]}, v{fb[m]}, v{44+m}, v{fo[m]}", 1, [i3])
            i3 = add(f"v_rcp_f32_e64 v{44+m}, v{fo[m]}", 2, [i3])
            i4 = add(f"v_mul_f32_e64 v{fs[m]}, v{fs[m]}, v{44+m}", 1, [i3])
            add(f"v_mul_f32_e64 v{fb[m]}, v{fb[m]}, v{44+m}", 1, [i3])
            i5 = add(f"v_mul_f32_e64 v{fo[m]}, v{fs[m]}, v{phi_o[m]}", 1, [i4])
            i6 = add(f"v_mul_f32_e64 v{fs[m]}, v{fs[m]}, v{phi_s[m]}", 1, [i5])
            for jq in range(4):
                for h in (0, 2): late.append((m, jq, h))
        release(k0)
    late = []
    for n in range(128, 256):
        if n % 8 == 0: a.c(f"unit {n >> 3}")
        if n == 148: send_items()
        step(n)
        if n == 178 and (x2 or not OUT):
            if non_at > 140: a.wait(vm="nonce")
            nonce_check()
        if n == 181 and OUT and not x2:
            a.c("same XCD as the partner workgroup?")
            a.wait(vm="idr")
            e(f"v_xor_b32 v{vId}, v{vId}, v{vNon}"); e("s_nop 0"); e(f"v_readfirstlane_b32 {sDiff}, v{vId}")
            e(f"s_xor_b32 {sDiff}, {sDiff}, {sXcc}")
            if force_slow: e(f"s_mov_b32 {sDiff}, 1")
        if n == 192: stamp()
        if n == send_dl: a.c("partial sums sent"); stamp()
        if n == n_chk: check()
    assert not pending
    a.c("final combine")
    stamp()
    cur[0] = 256
    while left:
        if not (take(1) or take(2)): e("s_nop 0")
    order = [0, 2, 4, 1, 3, 5] if TAG else range(6)
    if ltr:
        e(f"s_mul_i32 s38, {sMh}, {slot_of(29) - slot_of(28)}"); e(f"s_add_u32 s38, s38, {slot_of(28)}"); e(f"s_add_u32 s38, s38, {sRing}")
        e("v_and_b32 v1, 15, v0"); e("v_and_b32 v2, 63, " + f"v{vOut}"); e("v_and_b32 v3, 7, v0"); e("v_lshlrev_b32 v3, 4, v3")
        e("v_xor_b32 v2, v2, v3"); e("v_lshl_add_u32 v2, v1, 7, v2"); e(f"v_add_u32 v{vWr}, s38, v2"); e(f"v_xor_b32 v25, 64, v{vWr}")
        e("v_lshrrev_b32 v1, 3, v0"); e("v_lshlrev_b32 v2, 4, v1"); e("v_xor_b32 v2, v2, v3"); e("v_lshl_add_u32 v2, v1, 7, v2"); e(f"v_add_u32 v{vSb}, s38, v2")
        if t64:
            e("v_lshrrev_b32 v1, 4, v0"); e("v_lshlrev_b32 v1, 3, v1"); e("v_xor_b32 v1, v1, v3"); e(f"v_lshlrev_b32 v2, 3, v{vQ16}"); e("v_add3_u32 v1, v1, v2, s38")
            for j in range(1, 4): e(f"v_xor_b32 v{1+j}, {32*j}, v1")
    def own_part(i):
        m, p = msgs[i]; fp = vr(fo[m], 2)
        for jj in range(0 if x_fakeP else 2):
            o = B1(2*p + jj, m)
            for h in (0, 2): e(f"v_pk_mul_f32 {vr(o + h, 2)}, {vr(o + h, 2)}, {fp} op_sel:[0,1] op_sel_hi:[1,1]")
        for jj in range(2):
            o = B1(2*p + jj, m)
            for h in (0, 2): e(f"v_pk_fma_f32 {vr(o + h, 2)}, {vr(OV(2*p + jj, m) + h, 2)}, {fp}, {vr(o + h, 2)} op_sel_hi:[1,0,1]")
    if not TAG:
        for i in (0, 2, 4, 1, 3, 5): own_part(i)
    if ltr:
        a.c("output rows are transposed through LDS so that every store writes whole 128-byte rows")
        vTw, vTr = vWr, vSb
        def msg(i):
            m, p = msgs[i]
            a.wait(vm=f"rc{i}")
            if i == 0: stamp()
            u0 = [PK(2 * (i & 1)), PK(2 * (i & 1) + 1)]
            for jj in range(2):
                for h in range(2):
                    src = RC(i) + 2 * jj + h
                    e(f"v_lshlrev_b32 v{u0[jj] + 2*h}, 16, v{src}"); e(f"v_and_b32 v{u0[jj] + 2*h + 1}, {sHi}, v{src}")
            bp, hi = pair(fb[m])
            for jj in range(2):
                o = B1(2*p + jj, m)
                for h in (0, 2): e(f"v_pk_fma_f32 {vr(o + h, 2)}, {vr(u0[jj] + h, 2)}, {bp}, {vr(o + h, 2)} op_sel:[0,{hi},0] op_sel_hi:[1,{hi},1]")
            x = OV(2*p, m)
            for jj in range(2):
                o = B1(2*p + jj, m)
                e(f"v_cvt_pk_bf16_f32 v{x + 2*jj}, v{o}, v{o+1}"); e(f"v_cvt_pk_bf16_f32 v{x + 2*jj + 1}, v{o+2}, v{o+3}")
            if t64:
                for jj in range(2): a.lds(f"ds_write_b64 v{1 + 2*p + jj}, {vr(x + 2*jj, 2)} offset:{2048*m}", f"tw{i}")
                return
            e(f"s_add_u32 s38, {sOo}, {4096*i}"); e("s_nop 0")
            e(f"v_permlane16_swap_b32 v{x}, v{x+2}"); e(f"v_permlane16_swap_b32 v{x+1}, v{x+3}")
            a.lds(f"ds_write_b128 v{vTw if p == 0 else 25}, {vr(x)} offset:{2048*m}", f"tw{i}")
        def rows(m):
            for h in range(2): a.lds(f"ds_read_b128 {vr(OV(2*h + 1, m))}, v{vTr} offset:{2048*m + 1024*h}", f"tr{m}{h}")
        def out(m):
            for h in range(2):
                a.wait(lg=f"tr{m}{h}")
                e(f"s_add_u32 s39, {sOo}, {4096*(2*m + h)}")
                a.vmem(f"buffer_store_dwordx4 {vr(OV(2*h + 1, m))}, v{vXa}, {sO}, s39 offen {opol}", "out")
        if tord == 0: msg(0); msg(1); rows(0); msg(2); out(0); msg(3); rows(1); msg(4); out(1); msg(5); rows(2); out(2)
        elif tord == 1: msg(0); msg(1); rows(0); msg(2); msg(3); rows(1); out(0); msg(4); msg(5); rows(2); out(1); out(2)
        else: msg(0); msg(1); msg(2); rows(0); msg(3); out(0); msg(4); rows(1); msg(5); rows(2); out(1); out(2)
        order = []
    elif one_swap:
        sOm = [sOo, "s38", "s39"]
        e(f"s_add_u32 s38, {sOo}, 8192"); e(f"s_add_u32 s39, {sOo}, 16384")
        fin = []
        for i in range(6):
            m, p = msgs[i]
            a.wait(vm=f"rc{i}")
            if i == 0: stamp()
            u0 = [PK(2 * (i & 1)), PK(2 * (i & 1) + 1)]
            un = []
            for jj in range(2):
                for h in range(2):
                    src = RC(i) + 2 * jj + h
                    un += [f"v_lshlrev_b32 v{u0[jj] + 2*h}, 16, v{src}", f"v_and_b32 v{u0[jj] + 2*h + 1}, {sHi}, v{src}"]
            for o_ in un[:2]: e(o_)
            for o_ in fin[:2]: e(o_)
            if fin: a.vmem(fin[2], "out")
            for o_ in un[2:]: e(o_)
            bp, hi = pair(fb[m])
            for jj in range(2):
                o = B1(2*p + jj, m)
                for h in (0, 2): e(f"v_pk_fma_f32 {vr(o + h, 2)}, {vr(u0[jj] + h, 2)}, {bp}, {vr(o + h, 2)} op_sel:[0,{hi},0] op_sel_hi:[1,{hi},1]")
            x = OV(2*p, m)
            for jj in range(2):
                o = B1(2*p + jj, m)
                e(f"v_cvt_pk_bf16_f32 v{x + 2*jj}, v{o}, v{o+1}"); e(f"v_cvt_pk_bf16_f32 v{x + 2*jj + 1}, v{o+2}, v{o+3}")
            fin = [f"v_permlane16_swap_b32 v{x}, v{x+2}", f"v_permlane16_swap_b32 v{x+1}, v{x+3}",
                   f"buffer_store_dwordx4 {vr(x)}, v{vXa if x_linst else vOut}, {sO}, {sOm[m]} offen offset:{(0 if x_linst else 64)*p} {opol}"]
        e("s_nop 1")
        e(fin[0]); e(fin[1]); a.vmem(fin[2], "out")
        order = []
    for i in order:
        m, p = msgs[i]
        if TAG: own_part(i)
        else: a.wait(vm=f"rc{i}")
        if i == 0 and not TAG: stamp()
        u0 = [G(8 + 2 * (i & 1)), G(9 + 2 * (i & 1))] if TAG else [PK(2 * (i & 1)), PK(2 * (i & 1) + 1)]
        for jj in range(2):
            for h in range(2):
                t = 4 * i + 2 * jj + h
                src = G(t // 3) + t % 3 if TAG else RC(i) + (t & 3)
                e(f"v_lshlrev_b32 v{u0[jj] + 2*h}, 16, v{src}"); e(f"v_and_b32 v{u0[jj] + 2*h + 1}, {sHi}, v{src}")
        bp, hi = pair(fb[m])
        for jj in range(2):
            o = B1(2*p + jj, m)
            for h in (0, 2): e(f"v_pk_fma_f32 {vr(o + h, 2)}, {vr(u0[jj] + h, 2)}, {bp}, {vr(o + h, 2)} op_sel:[0,{hi},0] op_sel_hi:[1,{hi},1]")
        x = OV(2*p, m)
        for jj in range(2):
            o = B1(2*p + jj, m)
            e(f"v_cvt_pk_bf16_f32 v{x + 2*jj}, v{o}, v{o+1}"); e(f"v_cvt_pk_bf16_f32 v{x + 2*jj + 1}, v{o+2}, v{o+3}")
        e(f"s_add_u32 s38, {sOo}, {8192*m}")
        e("s_nop 0")
        e(f"v_permlane32_swap_b32 v{x}, v{x+2}"); e(f"v_permlane32_swap_b32 v{x+1}, v{x+3}")
        e("s_nop 0")
        e(f"v_permlane16_swap_b32 v{x}, v{x+2}"); e(f"v_permlane16_swap_b32 v{x+1}, v{x+3}")
        a.vmem(f"buffer_store_dwordx4 {vr(x)}, v{vOut}, {sO}, s38 offen offset:{64*p} {opol}", "out")
    if tl:
        stamp()
        e("s_waitcnt vmcnt(0)")
        stamp()
        e("s_waitcnt lgkmcnt(0)")
        e("s_lshl_b32 s38, s2, 2"); e("s_add_u32 s38, s38, s3"); e("s_lshl_b32 s38, s38, 6"); e("s_add_u32 s38, s38, 0x1010000")
        e("v_mov_b32 v8, s38")
        for k in tls[:16]:
            e(f"v_mov_b32 v4, s{64+2*k}")
            e(f"global_store_dword v8, v4, s[58:59] offset:{4*k}")
    if spin:
        e("s_waitcnt vmcnt(0)")
        a.label("L_spin")
        e("s_memrealtime s[44:45]"); e("s_waitcnt lgkmcnt(0)")
        e("s_sub_u32 s44, s44, s40"); e(f"s_cmp_lt_u32 s44, {spin*100}"); e("s_cbranch_scc1 L_spin")
    if stamps:
        e("s_waitcnt vmcnt(0)")
        e("s_memrealtime s[42:43]")
        e("s_lshl_b32 s38, s2, 2"); e("s_add_u32 s38, s38, s3"); e("s_lshl_b32 s38, s38, 4"); e("s_add_u32 s38, s38, 0x1000000")
        e("s_waitcnt lgkmcnt(0)")
        e("v_mov_b32 v4, s40"); e("v_mov_b32 v5, s41"); e("v_mov_b32 v6, s42"); e("v_mov_b32 v7, s43"); e("v_mov_b32 v8, s38")
        e("s_mov_b64 exec, 1")
        e("global_store_dwordx4 v8, v[4:7], s[58:59]")
    e("s_endpgm")
    a.c("slow paths: the nonce or the partner's data was not there yet")
    a.label("L_nonce")
    e("s_mov_b32 s39, 0x100000")
    a.label("L_nonce2")
    e(f"global_load_dword v{vNon}, v{vDbg}, {sDbg} sc1")
    e("s_sub_u32 s39, s39, 1"); e("s_cmp_eq_u32 s39, 0")
    e("s_waitcnt vmcnt(0)")
    e("s_cbranch_scc1 L_havenonce")
    e(f"v_cmp_eq_u32 vcc, 0, v{vNon}"); e("s_cbranch_vccnz L_nonce2")
    e("s_branch L_havenonce")
    if x2:
        a.label("L_retry")
        e("s_mov_b32 s39, 0x80000")
        a.label("L_retry2")
        for op, _ in rstat: e(op)
        e("s_sub_u32 s39, s39, 1"); e("s_cmp_eq_u32 s39, 0")
        e("s_waitcnt vmcnt(0)")
        e("s_cbranch_scc1 L_got")
        e(f"v_xor_b32 v62, v43, v{vNon}"); e(f"v_xor_b32 v63, v47, v{vNon}"); e("v_lshlrev_b32 v63, 4, v63"); e("v_or_b32 v62, v62, v63")
        e("v_cmp_ne_u32 vcc, 0, v62"); e("s_cbranch_vccnz L_retry2")
        if not force_slow: e("v_cmp_ne_u32 vcc, v47, v35"); e("s_cbranch_vccz L_got")
        a.c("partner on another XCD: release the own partial sums, second hand-off word, acquire")
        e("buffer_wbl2 sc1"); e("s_waitcnt vmcnt(0)")
        e(f"buffer_store_dword v{vNon}, v{vZero}, {sW}, {sPin} offen sc1")
        e("s_mov_b32 s39, 0x80000")
        a.label("L_rel")
        e(f"buffer_load_dword v62, v{vZero}, {sW}, {sIn} offen sc1")
        e("s_sub_u32 s39, s39, 1"); e("s_cmp_eq_u32 s39, 0")
        e("s_waitcnt vmcnt(0)")
        e("s_cbranch_scc1 L_inv")
        e(f"v_cmp_ne_u32 vcc, v62, v{vNon}"); e("s_cbranch_vccnz L_rel")
        a.label("L_inv")
        e("buffer_inv sc1"); e("s_waitcnt vmcnt(0)")
        for op in rdata: e(op[0])
        e("s_branch L_invdone")
    else:
        a.label("L_retry")
        e("s_mov_b32 s39, 0x80000")
        a.label("L_retry2")
        for op, _ in rstat + (rdata if TAG else []): e(op)
        e("s_sub_u32 s39, s39, 1"); e("s_cmp_eq_u32 s39, 0")
        e("s_waitcnt vmcnt(0)")
        e("s_cbranch_scc1 L_got")
        tag_check()
        e("s_cbranch_vccnz L_retry2")
        e("s_branch L_got")
    if OUT and not x2:
        a.c("slow paths: partner on another XCD (release / acquire)")
        a.label("L_wb")
        e("s_waitcnt vmcnt(0)"); e("buffer_wbl2 sc1"); e("s_waitcnt vmcnt(0)"); e("s_branch L_wbdone")
        a.label("L_inv")
        e("buffer_inv sc1"); e("s_waitcnt vmcnt(0)")
        for op in rdata: e(op[0])
        e("s_branch L_invdone")
    a.c("slow path: raise the softmax reference to the running max and rescale the finished P tiles")
    for kp in chk_ids:
        a.label(f"L_bump{kp}")
        e(f"s_mov_b32 s39, {kp}")
        if kp < k0: e("s_branch L_bump")
    a.label("L_bump")
    for m in range(3):
        e(f"v_mov_b32 v32, v{vR[m]}"); e(f"v_mov_b32 v33, v{vR[m]}"); e("s_nop 1")
        e("v_permlane32_swap_b32 v32, v33"); e("v_max_f32 v32, v32, v33"); e("v_mov_b32 v33, v32"); e("s_nop 1")
        e("v_permlane16_swap_b32 v32, v33"); e("v_max_f32 v32, v32, v33")
        e(f"v_mul_f32 v32, {sC}, v32"); e("v_ceil_f32 v32, v32")
        e(f"v_sub_f32 v{28+m}, v{vM[m]}, v32"); e(f"v_mov_b32 v{vM[m]}, v32"); e(f"v_exp_f32 v{28+m}, v{28+m}")
    if l1:
        e("s_nop 7")
        for m in range(3):
            e(f"v_accvgpr_read_b32 v32, a{Lr(m)}"); e(f"v_mul_f32 v32, v32, v{28+m}"); e(f"v_accvgpr_write_b32 a{Lr(m)}, v32")
    for kp in chk_ids[:-1]:
        e(f"s_cmp_eq_u32 s39, {kp}"); e(f"s_cbranch_scc1 L_fix{kp-1}")
    for kp in range(k0 - 1, -1, -1):
        a.label(f"L_fix{kp}")
        for m in range(3):
            for r in range(4):
                x = S(2*kp, m, r)
                e(f"v_lshlrev_b32 v32, 16, v{x}"); e(f"v_and_b32 v33, {sHi}, v{x}")
                e(f"v_mul_f32 v32, v32, v{28+m}"); e(f"v_mul_f32 v33, v33, v{28+m}")
                e(f"v_cvt_pk_bf16_f32 v{x}, v32, v33")
    e("s_nop 1")
    for kp in chk_ids[:-1]:
        e(f"s_cmp_eq_u32 s39, {kp}"); e(f"s_cbranch_scc1 L_back{kp}")
    e(f"s_branch L_back{k0}")
    a.label("L_end")
    e("s_endpgm")
    if alg:
        L = a.text().split("\n")
        k_a = next(i for i, x in enumerate(L) if x == "L_s0:"); k_b = next(i for i, x in enumerate(L) if "slow paths: the nonce" in x)
        a.lines = align.align(L, k_a, k_b, alg == 2)
    return kernel_file(a.text(), notes=NOTES, sgpr=100 if tl else 64)

def emit(variants, tl_only=False):
    names = []
    for n, kw in variants.items():
        src = gen(**kw)
        L = src.split("\n")
        for b in hazard.check(L): print("HAZARD", n, b)
        ks = [next(i for i, x in enumerate(L) if key in x) for key in ("; unit 0", "row max over", "; unit 16", "; unit 24", "final combine", "slow paths")]
        print(n, "est cycles: pro", hazard.estimate(L[:ks[0]]), "ph1", hazard.estimate(L[ks[0]:ks[1]]), "bnd", hazard.estimate(L[ks[1]:ks[2]]),
              "2a", hazard.estimate(L[ks[2]:ks[3]]), "2b", hazard.estimate(L[ks[3]:ks[4]]), "tail", hazard.estimate(L[ks[4]:ks[5]]))
        if not tl_only:
            open(f"cdna_kernels/{n}.s", "w").write(src)
            build_co(gen(stamps=True, **kw), f"bench/{n}")
        build_co(gen(stamps=True, tl=True, **kw), f"bench/{n}_tl")
        build_co(gen(stamps=True, tl=True, tlb=True, **kw), f"bench/{n}_tb")
        names.append(n)
    for sfx in ("", "_tl", "_tb"): print(" ".join(n + sfx + ".co" for n in names))
    print(str(["bench/host"] + [f"bench/{n}{sfx}.co" for n in names for sfx in (("_tl", "_tb") if tl_only else ("", "_tl", "_tb"))]).replace("'", '"'))
    print(str([f"cdna_kernels/{n}.s" for n in names]).replace("'", '"'))

PL = {3: [0], 4: [1, 2], 5: [3, 4], 6: [5]}
FINAL = dict(even=True, one_swap=True, mode="out", fld="sc1", x2=True, l1=True, n_wr=139, pro=2, ltr=True, t64=True, tord=1, plan=PL, alg=1, pre_at=(), tramp=(2,)*6 + (3,)*3, prio=True, gb_shift=1)

if __name__ == "__main__":
    emit({"final": FINAL, "final_thr": dict(FINAL, thr=-1.0), "final_slow": dict(FINAL, force_slow=True)})
```

```python
import sys, struct
from asmlib import *
import hazard, align

C_SCALE = 0.0625 * 1.4426950408889634
def f32bits(x): return struct.unpack("<I", struct.pack("<f", x))[0]

RING = 81920
SLOT = 8192
LAST = 255
WSTAT = 0x800000

NOTES = """; GQA attention. Workgroup = 96 query rows (one q head) x 512 keys, wave = 48 rows x 256 keys.
; K/V tiles go by LDS-DMA into two rings shared by wave pairs. Partial outputs are merged between sibling
; over as bf16 partial sums parked in the partner's output rows (overwritten by its final stores), announced
; by (max, sum) words in d_ws tagged with a per-launch nonce from d_debug and the sender's XCD id; different
"""
THR = 16.0

VSEQ = [(3, 0), (2, 0), (3, 1), (2, 1), (3, 2), (3, 3), (2, 2), (2, 3)] + [(1, k) for k in range(4)] + [(0, k) for k in range(4)]

def gen(pol="nt", qpol="", opol="", W=7, LA=6, LA2=2, NS=6, T=4, pro=3, stamps=False, tl=False, tlb=False, clk=False, spin=0,
        xst="sc1", xld="sc1", send_dl=202, mode="flag", n_flag=28, n_recv=236, n_poll=240, n_chk=247, swaps=True, x_nodma=False, thr=THR, dual=False, k0=7, pre_at=(90, 106, 114, 140), non_at=98, rate=2, qdma=True, tramp=(), repf=(), pf0=True, ed=0, force_slow=False, fld="nt", fst="", n_fill=0, late3=False, sst=(), even=False, wpace=1.0, rpace=2, xbar=0, x2=False, x_nosend=False, x_norecv=False, x_nolds=False, one_swap=False, nv=0, vat=(), plan=None, l1=False, n_wr=130, x_fakeP=False, w64=False, x_linst=False, ltr=False, t64=False, tord=0, alg=False, prio=False, gb_shift=0, x_nomax=False, x_nophi=False):
    a = Asm(); e = a.e
    STAT = NS * SLOT
    SOFF = min(24576, RING - STAT - 1024)
    vKd = [1, 2, 3, 4]; vKr = [5, 6, 7, 8]; vVr = [9, 10, 11, 12]; vR = [13, 14, 15]; vM = [16, 17, 18]; vVd = 19
    TAG = mode == "tag"; OUT = mode == "out"
    if OUT and not x2: non_at = 40
    k0 = min(k0, 7 - ed)
    if plan is None: plan = {p: [p - ed] for p in range(7) if 0 <= p - ed < k0}
    k0 = sum(len(v) for v in plan.values())
    chk_ids = [v[0] for p, v in sorted(plan.items()) if v[0]] + [k0]
    l_at = {}
    if l1:
        for p, v in plan.items():
            for i, kp in enumerate(v):
                if p < 6:
                    for m in range(3): l_at[16 * p + 33 + 4 * i + m] = (kp, m)
    l_early = {x for x in l_at.values()}
    vOnes = 20; vNon = 24; vDum = 25; vZero = 26; vLane16 = 27
    vDbg, vSt, vSs, vWr, vSb, vQ16, vOut = 52, 53, 54, 55, 56, 57, 58
    def S(kt, m, r=0): return 64 + (kt * 3 + m) * 4 + r
    def Z(i): return S(2 * (i // 3) + 1, i % 3)
    def vr(b, n=4): return f"v[{b}:{b+n-1}]"
    def ar(b, n=4): return f"a[{b}:{b+n-1}]"
    def pair(r): return (vr(r & ~1, 2), r & 1)
    def Q(m, s): return (m * 8 + s) * 4
    def OA(x, jq, m): return ((4 * (x >> 1) + jq) * 3 + m) * 4
    def OV(jq, m): return Z(jq * 3 + m)
    def B3(jq, m): return Z(12 + jq * 3 + m)
    def B1(jq, m): return S(2 * jq, m)
    msgs = [(m, p) for m in range(3) for p in range(2)]
    dead = [B3(2 * p + jj, m) for (m, p) in msgs for jj in range(2)]
    def G(g): return dead[g]
    def Lr(m): return 192 + 4 * m
    def F(n): return 204 + 4 * (n % W)
    sQ, sK, sV, sO, sW = "s[12:15]", "s[16:19]", "s[20:23]", "s[24:27]", "s[48:51]"
    sKb, sDst, sRing, sT, sC, sRow, sOwn = "s28", "s29", "s30", "s31", "s32", "s33", "s34"
    sMh, sKq, sGrp, sMem, sIn, sPin, sSib, sLow = "s35", "s46", "s47", "s52", "s53", "s54", "s55", "s44"
    sVb = ["s60", "s61", "s62", "s63"]
    sIn2, sPin2, sInS, sPinS, sHi, sThr = "s4", "s5", "s6", "s7", "s8", "s9"
    sDbg = "s[56:57]"
    sXcc, sDiff, sOo, sPo, sTx = "s10", "s11", "s42", "s45", "s43"
    vXa, vId = 59, 25
    MF = "v_mfma_f32_16x16x32_bf16"
    tls = []
    def stamp(bar=False, force=False):
        if tl and ((bar == tlb and not sst) or force):
            k = len(tls); tls.append(k)
            e(f"{'s_memtime' if clk else 's_memrealtime'} s[{64+2*k}:{65+2*k}]")

    e("s_cmp_ge_u32 s2, 256"); e("s_cbranch_scc1 L_end")
    e("s_memrealtime s[40:41]")
    if tl and clk: e("s_memtime s[64:65]")
    e("s_load_dwordx4 s[4:7], s[0:1], 0"); e("s_load_dwordx4 s[8:11], s[0:1], 16"); e("s_load_dwordx4 s[56:59], s[0:1], 32")
    a.c("pull the kernel's code into L2")
    e("s_getpc_b64 s[36:37]")
    e("v_lshlrev_b32 v28, 7, v0")
    e("v_min_u32 v28, L_nonce - L_pc, v28")
    a.label("L_pc")
    if pf0: a.vmem(f"global_load_dword v{vDum}, v28, s[36:37]", "code")
    e("v_lshrrev_b32 v30, 6, v0"); e("v_and_b32 v0, 63, v0")
    e("v_readfirstlane_b32 s3, v30")
    a.c("workgroup -> (kv group, q head of the group, key half); ids equal mod 8 work on one group")
    e(f"s_and_b32 {sGrp}, s2, 7"); e("s_lshr_b32 s39, s2, 5"); e("s_lshl_b32 s39, s39, 3"); e(f"s_add_u32 {sGrp}, {sGrp}, s39")
    e(f"s_bfe_u32 {sMem}, s2, 0x20003")
    e(f"s_and_b32 s39, {sMem}, 1"); e(f"s_lshl_b32 s38, {sGrp}, 1"); e("s_add_u32 s38, s38, s39"); e(f"s_mul_i32 {sRow}, s38, {96*512}")
    e(f"s_lshr_b32 s45, {sMem}, 1"); e(f"s_lshl_b32 s43, {sGrp}, 19"); e("s_lshl_b32 s38, s45, 18"); e("s_add_u32 s43, s43, s38")
    e(f"s_and_b32 {sMh}, s3, 1"); e(f"s_lshr_b32 {sKq}, s3, 1")
    a.c("K unit u of ring kq = 16-key tile 2u+kq of the key half; wave mh loads rows 8*mh..")
    e(f"s_lshl_b32 s38, {sKq}, 13"); e("s_add_u32 s43, s43, s38"); e(f"s_lshl_b32 s38, {sMh}, 12"); e(f"s_add_u32 {sKb}, s43, s38")
    e(f"s_mul_i32 {sRing}, {sKq}, {RING}"); e(f"s_add_u32 {sDst}, {sRing}, s38")
    a.c("K / Q DMA source offsets")
    e("v_lshrrev_b32 v30, 5, v0"); e("v_and_b32 v31, 31, v0"); e("v_lshlrev_b32 v32, 1, v30"); e("v_xor_b32 v31, v31, v32")
    e("v_lshlrev_b32 v31, 4, v31"); e(f"v_lshl_add_u32 v{vKd[0]}, v30, 9, v31")
    for n in range(1, 4): e(f"v_xor_b32 v{vKd[n]}, {64*n}, v{vKd[0]}")
    e(f"s_lshl_b32 s38, {sMh}, 7")
    e(f"v_xor_b32 v33, s38, v{vKd[0]}"); e(f"v_xor_b32 v34, s38, v{vKd[1]}")
    e("s_lshl_b32 s39, s3, 11")
    e(f"s_add_u32 {sT}, {sRow}, s39")
    e("s_waitcnt lgkmcnt(0)")
    if tl and not dual:
        tls.append(0)
        if not clk: e("s_mov_b32 s64, s40")
    e("s_mov_b32 s12, s4"); e("s_mov_b32 s13, s5"); e("s_mov_b32 s14, 6291456"); e("s_mov_b32 s15, 0x20000")
    e("s_mov_b32 s16, s6"); e("s_mov_b32 s17, s7"); e("s_mov_b32 s18, 0x2000000"); e("s_mov_b32 s19, 0x20000")
    for t in range(6):
        e(f"s_add_u32 m0, s39, {(t // 3)*RING + STAT + (t % 3)*8192}")
        if t: e(f"s_add_u32 {sT}, {sT}, 8192")
        else: e("s_nop 0")
        a.vmem(f"buffer_load_dwordx4 v33, {sQ}, {sT} offen {qpol} lds", "Q")
        a.vmem(f"buffer_load_dwordx4 v34, {sQ}, {sT} offen offset:1024 {qpol} lds", "Q")

    def ridx(u): return u if u < 16 else u - nv
    def slot_of(u): return STAT + (u - 16) * SLOT if 16 <= u < 16 + nv else (ridx(u) % NS) * SLOT
    def dma_list(u):
        slot = slot_of(u)
        out = []
        for n in range(4):
            off = f" offset:{1024*n}" if n else ""
            pre = [f"s_add_u32 m0, {sDst}, {slot}"] if n == 0 else []
            if u < 16:
                if n == 0: pre.append(f"s_add_u32 {sT}, {sKb}, {u*16384}")
                ins = f"buffer_load_dwordx4 v{vKd[n]}, {sK}, {sT} offen{off} {pol} lds"
            else:
                x, kpp = VSEQ[u - 16]
                pre.append(f"s_add_u32 {sT}, {sVb[x]}, {kpp*65536 + (0, 3072, 14336, 17408)[n]}")
                ins = f"buffer_load_dwordx4 v{vVd}, {sV}, {sT} offen{off} {pol} lds"
            out.append([f"U{u}", pre, ins])
        return out
    def dma_emit(item):
        tag, pre, ins = item
        for p in pre: e(p)
        a.vmem(ins, tag)
    early = [it for u in range(T) for it in dma_list(u)]
    for it in early[:4*pro]: dma_emit(it)
    e("s_mov_b32 s20, s8"); e("s_mov_b32 s21, s9"); e("s_mov_b32 s22, 0x2000000"); e("s_mov_b32 s23, 0x20000")
    e("s_mov_b32 s24, s10"); e("s_mov_b32 s25, s11"); e("s_mov_b32 s26, 6291456"); e("s_mov_b32 s27, 0x20000")
    e("s_mov_b32 s48, s58"); e("s_mov_b32 s49, s59"); e(f"s_mov_b32 s50, {WSTAT + 1024*512}"); e("s_mov_b32 s51, 0x20000")
    e(f"s_mov_b32 {sC}, {hex(f32bits(C_SCALE))}"); e(f"s_mov_b32 {sLow}, 0xff7fffff"); e(f"s_mov_b32 {sHi}, 0xffff0000"); e(f"s_mov_b32 {sThr}, {hex(f32bits(thr))}")
    e(f"s_lshl_b32 {sOwn}, s45, 1"); e(f"s_add_u32 {sOwn}, {sOwn}, {sKq}"); e(f"s_lshl_b32 {sOwn}, {sOwn}, 7")
    e(f"s_lshl_b32 s38, {sMh}, 15"); e("s_add_u32 s43, s43, s38"); e(f"s_add_u32 {sVb[0]}, s43, {sOwn}")
    for x in range(1, 4): e(f"s_xor_b32 {sVb[x]}, {sVb[0]}, {128*x}")
    e("s_lshl_b32 s38, s2, 2"); e("s_add_u32 s38, s38, s3"); e(f"s_lshl_b32 {sIn}, s38, 13"); e(f"s_xor_b32 {sPin}, {sIn}, {64 << 13}")
    e(f"s_add_u32 {sIn2}, {sIn}, 4096"); e(f"s_add_u32 {sPin2}, {sPin}, 4096")
    e("s_lshl_b32 s38, s38, 9"); e(f"s_add_u32 {sInS}, s38, {WSTAT}"); e(f"s_xor_b32 {sPinS}, {sInS}, {64 << 9}")
    e(f"s_mul_i32 s38, {sMh}, {48*512}"); e(f"s_add_u32 {sOo}, {sRow}, s38"); e(f"s_add_u32 {sOo}, {sOo}, {sOwn}")
    if OUT:
        e(f"s_xor_b32 {sPo}, {sOo}, 256")
        e(f"s_getreg_b32 {sXcc}, hwreg(HW_REG_XCC_ID, 0, 4)"); e(f"s_lshl_b32 {sXcc}, {sXcc}, 28")
        e(f"v_lshrrev_b32 v39, 3, v0"); e("v_and_b32 v40, 7, v0"); e("v_lshlrev_b32 v40, 4, v40"); e(f"v_lshl_add_u32 v{vXa}, v39, 9, v40")
    a.c("the group's first workgroup publishes the launch nonce")
    e(f"s_lshl_b32 s38, {sGrp}, 2"); e(f"v_mov_b32 v{vZero}, 0"); e(f"v_mov_b32 v{vDbg}, s38")
    e(f"s_or_b32 s38, {sMem}, s3"); e("s_cmp_eq_u32 s38, 0"); e("s_cbranch_scc0 L_nopub")
    e("s_or_b32 s38, s40, 1"); e("v_mov_b32 v46, s38")
    e(f"global_store_dword v{vDbg}, v46, {sDbg} sc1")
    a.label("L_nopub")
    a.c("K fragment read addresses (v35..v38: the same pattern for the Q tiles)")
    e("v_and_b32 v30, 15, v0"); e("v_lshrrev_b32 v31, 4, v0"); e("v_and_b32 v32, 7, v0"); e("v_lshlrev_b32 v32, 1, v32")
    e("v_xor_b32 v32, v32, v31"); e("v_lshlrev_b32 v32, 4, v32"); e("v_lshl_add_u32 v35, v30, 9, v32")
    for s in range(1, 4): e(f"v_xor_b32 v{35+s}, {64*s}, v35")
    e(f"s_mul_i32 s38, {sMh}, {RING}"); e(f"s_add_u32 s38, s38, {STAT}")
    for s in range(4):
        e(f"v_add_u32 v{vKr[s]}, {sRing}, v{35+s}")
        e(f"v_add_u32 v{35+s}, s38, v{35+s}")
    a.c("exchange-area and output addresses")
    e(f"v_lshlrev_b32 v{vQ16}, 4, v30"); e(f"v_lshlrev_b32 v{vLane16}, 4, v0")
    if one_swap:
        e("v_lshrrev_b32 v39, 1, v31"); e("v_and_b32 v40, 1, v31"); e("v_lshlrev_b32 v40, 5, v40"); e(f"v_lshl_add_u32 v{vOut}, v39, 4, v40")
    else: e(f"v_lshlrev_b32 v{vOut}, 4, v31")
    e(f"v_lshl_add_u32 v{vOut}, v30, 9, v{vOut}")
    e(f"s_mul_i32 s38, {sMh}, 12288"); e(f"s_add_u32 s38, s38, {STAT}"); e(f"s_add_u32 s39, s38, {sRing}")
    e(f"v_add_u32 v{vWr}, s39, v{vLane16}")
    e(f"s_xor_b32 {sSib}, {sKq}, 1"); e(f"s_mul_i32 {sSib}, {sSib}, {RING}"); e(f"s_add_u32 s39, s38, {sSib}")
    e(f"v_add_u32 v{vSb}, s39, v{vLane16}")
    e(f"s_lshl_b32 s38, {sMh}, 9"); e(f"s_add_u32 s38, s38, {STAT + SOFF}")
    e(f"s_add_u32 s39, s38, {sRing}"); e(f"v_add_u32 v{vSt}, s39, v{vQ16}")
    e(f"s_add_u32 s39, s38, {sSib}"); e(f"v_add_u32 v{vSs}, s39, v{vQ16}")
    a.c("V DMA source offset and transposed-read addresses (128-byte rows)")
    e("v_lshrrev_b32 v39, 3, v0"); e("v_and_b32 v40, 6, v39"); e("v_and_b32 v41, 7, v0"); e("v_xor_b32 v40, v40, v41")
    e("v_lshlrev_b32 v40, 4, v40"); e(f"v_lshl_add_u32 v{vVd}, v39, 9, v40")
    e("v_and_b32 v39, 3, v39"); e("v_lshlrev_b32 v39, 5, v39"); e("v_lshrrev_b32 v40, 2, v0"); e("v_and_b32 v41, 3, v0")
    e("v_lshlrev_b32 v41, 3, v41"); e("v_lshl_add_u32 v41, v40, 7, v41"); e(f"v_add_u32 v41, {sRing}, v41")
    for j in range(4):
        e(f"v_xor_b32 v40, {32*j}, v39"); e(f"v_add_u32 v{vVr[j]}, v40, v41")
    for i in range(4): e(f"v_mov_b32 v{vOnes+i}, 0x3f803f80")
    vPg = 43 if False else 63
    if repf: e("s_lshl_b32 s38, s3, 11"); e(f"v_lshlrev_b32 v{vPg}, 3, v{vQ16}"); e(f"v_add_u32 v{vPg}, s38, v{vPg}")
    if n_fill: e(f"v_min_u32 v{vPg}, 47, v0"); e(f"v_lshlrev_b32 v{vPg}, 9, v{vPg}")
    stamp()
    a.wait(vm="U0")
    e("s_barrier")
    stamp()
    nxt = [tramp[0] + 1 if tramp else T + 1]
    pending = [it for u in range(pro, nxt[0]) for it in dma_list(u)]

    def vstep(n):
        u, s = n >> 3, n & 7
        x, kpp = VSEQ[u - 16]
        kl, jq = (s & 1, s >> 1) if u == 31 else (s >> 2, s & 3)
        return x, 2 * kpp + kl, kl, jq
    def rd_list(n):
        u, s = n >> 3, n & 7
        slot = slot_of(u)
        if u < 16: return [(f"ds_read_b128 {ar(F(n))}, v{vKr[s & 3]} offset:{slot + 256*(s >> 2)}", f"F{n}")]
        x, kp, kl, jq = vstep(n)
        o = slot + 4096 * kl
        return [(f"ds_read_b64_tr_b16 {ar(F(n), 2)}, v{vVr[jq]} offset:{o}", f"F{n}"),
                (f"ds_read_b64_tr_b16 {ar(F(n)+2, 2)}, v{vVr[jq]} offset:{o + 2048}", f"F{n}")]
    rd_at = {}
    for r in range(LA, 256):
        n = r - LA
        if r >= 248: n = max(n, 248 - LA2 + max(0, (r - 249) // 2))
        rd_at.setdefault(n, []).extend(rd_list(r))
    def mfmas(n):
        out = []
        if n < 128:
            kt, ss = n >> 3, n & 7
            for m in range(3):
                d = vr(S(kt, m))
                out.append(f"{MF} {d}, {ar(F(n))}, {ar(Q(m, ss))}, {d if ss else 0}")
            if n in l_at:
                kp, m = l_at[n]; d = ar(Lr(m))
                out.append(f"{MF} {d}, {vr(vOnes)}, {vr(S(2*kp, m))}, {d if kp else 0}")
        else:
            x, kp, kl, jq = vstep(n)
            for m in range(3):
                d = ar(OA(x, jq, m)) if x & 1 else vr(OV(jq, m))
                out.append(f"{MF} {d}, {ar(F(n))}, {vr(S(2*kp, m))}, {d if kp else 0}")
            if x == 3 and jq < 3 and (kp, jq) not in l_early:
                d = ar(Lr(jq))
                out.append(f"{MF} {d}, {vr(vOnes)}, {vr(S(2*kp, jq))}, {d if kp else 0}")
        return out
    g0 = [0]
    for n in range(256): g0.append(g0[-1] + len(mfmas(n)))
    first_use = {}; last_write = {}
    for n in range(128, 256):
        x, kp, kl, jq = vstep(n)
        first_use.setdefault(kp, n); last_write[(x, jq)] = n

    items = []
    def add(text, slots, deps=(), after=-1, dl=10**6, gate=0, tag=None, dist=0):
        items.append(dict(t=text, s=slots, deps=list(deps), after=after, dl=dl, gate=gate, tag=tag, dist=dist)); return len(items) - 1
    def pregs(kp, m): return [S(2*kp, m, r) for r in range(4)] + [S(2*kp+1, m, r) for r in range(4)]
    def p_items(kp, deps, dls):
        out = []
        for m in range(3):
            regs = pregs(kp, m); ids = []
            for x in regs:
                i0 = add(f"v_fma_f32 v{x}, v{x}, {sC}, -v{vM[m]}", 1, deps[m], -1, dls[m])
                ids.append(add(f"v_exp_f32_e64 v{x}, v{x}", 2, [i0], -1, dls[m]))
            prev = []
            for i in range(4):
                prev = [add(f"v_cvt_pk_bf16_f32 v{regs[i]}, v{regs[2*i]}, v{regs[2*i+1]}", 1, [ids[2*i], ids[2*i+1]] + prev, -1, dls[m])]
            out += prev
        return out
    def chk_text(kp):
        return [f"v_fma_f32 v{28+m}, v{vR[m]}, {sC}, -v{vM[m]}" for m in range(3)] + ["v_max3_f32 v28, v28, v29, v30",
                f"v_cmp_lt_f32 vcc, {sThr}, v28\n    s_cbranch_vccnz L_bump{kp}\nL_back{kp}:"]
    last_r = [[], [], []]; last_p = []
    for kt in range(15):
        for m in range(0 if x_nomax and kt >= 8 else 3):
            aft = g0[8*kt + 7] + m
            dl = g0[8*kt + 16] - 1
            r0 = sLow if kt == 0 else f"v{vR[m]}"
            i0 = add(f"v_max3_f32 v{vR[m]}, {r0}, v{S(kt,m,0)}, v{S(kt,m,1)}", 1, last_r[m], aft, dl)
            i1 = add(f"v_max3_f32 v{vR[m]}, v{vR[m]}, v{S(kt,m,2)}, v{S(kt,m,3)}", 1, [i0], aft, dl)
            last_r[m] = [i1]
        if kt & 1 and (kt >> 1) in plan:
            kp = plan[kt >> 1][0]
            dl1 = g0[8*kt + 16] - 1
            if kp == 0:
                deps = []
                for m in range(3):
                    t0, t1 = 32 + 2*m, 33 + 2*m
                    i0 = add(f"v_mov_b32_e64 v{t0}, v{vR[m]}", 1, last_r[m], -1, dl1); i1 = add(f"v_mov_b32_e64 v{t1}, v{vR[m]}", 1, last_r[m], -1, dl1)
                    last_r[m] = [i0, i1]
                    i2 = add(f"v_permlane32_swap_b32 v{t0}, v{t1}", 1, [i0, i1], -1, dl1, dist=2)
                    i3 = add(f"v_max_f32_e64 v{t0}, v{t0}, v{t1}", 1, [i2], -1, dl1)
                    i4 = add(f"v_mov_b32_e64 v{t1}, v{t0}", 1, [i3], -1, dl1)
                    i5 = add(f"v_permlane16_swap_b32 v{t0}, v{t1}", 1, [i4], -1, dl1, dist=2)
                    i6 = add(f"v_max_f32_e64 v{t0}, v{t0}, v{t1}", 1, [i5], -1, dl1)
                    i7 = add(f"v_mul_f32_e64 v{t0}, {sC}, v{t0}", 1, [i6], -1, dl1)
                    deps.append([add(f"v_ceil_f32_e64 v{vM[m]}, v{t0}", 1, [i7], -1, dl1)])
            elif x_nomax:
                deps = [[add("s_nop 0", 1, deps0[m], g0[8*kt + 7] + m, dl1)] for m in range(3)]
            else:
                tx = chk_text(kp)
                ds = [add(tx[m], 1, last_r[m], -1, dl1) for m in range(3)]
                i0 = add(tx[3], 1, ds, -1, dl1)
                ic = add(tx[4], 3, [i0] + last_p, -1, dl1)
                for m in range(3): last_r[m] = [ic]
                deps = [[ic]] * 3
            if kp == 0: deps0 = deps
            last_p = [i for kq_ in plan[kt >> 1] for i in p_items(kq_, deps, [g0[8*kt + 24] - 1] * 3)]
    left = list(range(len(items))); done = {}; mf_pos = {}
    def release(k0): left.extend(range(k0, len(items)))
    phi_o = [48, 50, 60]; phi_s = [49, 51, 61]
    def PK(i): return G(2 * i)
    def RC(i): return G(2 * i + 1)
    def send_items():
        k0 = len(items)
        dl = g0[send_dl] - 1; gate = max(193, gb)
        ph = []
        for m in range(3):
            i0 = add(f"v_max_f32_e64 v{28+m}, v{vM[m]}, v{40+m}", 1, [], -1, g0[186], 148)
            i1 = add(f"v_sub_f32_e64 v{phi_o[m]}, v{vM[m]}, v{28+m}", 1, [i0], -1, g0[186], 148)
            i2 = add(f"v_sub_f32_e64 v{phi_s[m]}, v{40+m}, v{28+m}", 1, [i0], -1, g0[186], 148)
            ph.append([add(f"v_exp_f32_e64 v{phi_o[m]}, v{phi_o[m]}", 2, [i1], -1, g0[186], 148),
                       add(f"v_exp_f32_e64 v{phi_s[m]}, v{phi_s[m]}", 2, [i2], -1, g0[186], 148)])
        adds = {}
        for i, (m, p) in enumerate(msgs):
            for jj in range(2):
                jq = 2 * p + jj
                adds[(jq, m)] = []
                for r in range(4):
                    if x_fakeP:
                        adds[(jq, m)] = [add("s_nop 0", 1, [], g0[last_write[(2, jq)]] + m, dl, 192)] * 4 if r == 0 else adds[(jq, m)]
                        continue
                    if x_nophi:
                        i0 = add("s_nop 0", 1, [], -1, dl, ga if i < 3 else gb) if r == 0 else i0
                        adds[(jq, m)].append(add(f"v_add_f32_e64 v{OV(jq,m)+r}, v{OV(jq,m)+r}, v{B3(jq,m)+r}", 1, [i0], g0[last_write[(2, jq)]] + m, dl, 192))
                        continue
                    i0 = add(f"v_mul_f32_e64 v{B3(jq,m)+r}, v{B3(jq,m)+r}, v{phi_s[m]}", 1, [ph[m][1]], -1, dl, ga if i < 3 else gb)
                    adds[(jq, m)].append(add(f"v_fma_f32 v{OV(jq,m)+r}, v{OV(jq,m)+r}, v{phi_o[m]}, v{B3(jq,m)+r}", 1, [i0, ph[m][0]],
                                             g0[last_write[(2, jq)]] + m, dl, 192))
        killer = [adds[(2*p + jj, m)] for (m, p) in msgs for jj in range(2)]
        ng = 8 if TAG else 6
        parts = {g: [add(f"v_mov_b32_e64 v{G(g)+3}, v{vNon}", 1, killer[g], -1, dl, gate)] if TAG else [] for g in range(ng)}
        for t in range(24):
            i, jj, h = t >> 2, (t >> 1) & 1, t & 1
            m, p = msgs[i]; jq = 2 * p + jj
            g, dst, kill = (t // 3, G(t // 3) + t % 3, killer[t // 3]) if TAG else (i, PK(i) + (t & 3), killer[2 * i])
            parts[g].append(add(f"v_cvt_pk_bf16_f32 v{dst}, v{OV(jq,m)+2*h}, v{OV(jq,m)+2*h+1}", 1, adds[(jq, m)][2*h:2*h+2] + kill, -1, dl, 192))
        for g in range(ng):
            if OUT:
                add(f"s_add_u32 {sTx}, {sPo}, {4096*g}\nbuffer_store_dwordx4 {vr(PK(g))}, v{vXa}, {sO}, {sTx} offen {fst}", 2, parts[g], -1, dl, 192, "send")
                continue
            add(f"buffer_store_dwordx4 {vr(G(g) if TAG else PK(g))}, v{vLane16}, {sW}, {sPin if g < 4 else sPin2} offen offset:{1024*(g & 3)} {xst}", 2, parts[g], -1, dl, gate, "send")
        if prio:
            for i, (m, p) in enumerate(msgs):
                for jj in range(2):
                    for k in adds[(2*p + jj, m)]:
                        items[k]["pr"] = i; items[items[k]["deps"][0]]["pr"] = i
                for k in parts[i]: items[k]["pr"] = i
        dl2 = dl if TAG else g0[8 * n_flag - LA] - 1
        st = [add(f"v_mov_b32_e64 v31, v{vNon}", 1, [], -1, dl2, 182), add(f"v_xor_b32_e64 v35, {sXcc}, v{vNon}" if x2 else f"v_mov_b32_e64 v35, v{vNon}", 1, [], -1, dl2, 182)]
        for m in range(3):
            i0 = add(f"v_accvgpr_read_b32 v{32+m}, a{Lr(m)}", 1, [], -1, dl2, 180)
            i0 = add(f"v_mul_f32_e64 v{32+m}, v{32+m}, v{phi_o[m]}", 1, [i0, ph[m][0]], -1, dl2, 180)
            st.append(add(f"v_fma_f32 v{32+m}, v{36+m}, v{phi_s[m]}, v{32+m}", 1, [i0, ph[m][1]], -1, dl2, ga))
        if TAG:
            for op in stat_stores: add(op, 2, st, -1, dl, gate, "send")
        release(k0)
    stat_stores = [f"buffer_store_dwordx4 v[28:31], v{vQ16}, {sW}, {sPinS} offen sc1", f"buffer_store_dwordx4 v[32:35], v{vQ16}, {sW}, {sPinS} offen offset:256 sc1"]
    cnt = [0, 0]
    def now():
        for x in a.lines[cnt[0]:]:
            p = hazard.parse(x)
            if p: cnt[1] += p["states"]
        cnt[0] = len(a.lines)
        return cnt[1]
    cur = [0]
    def ready(slots, mem=False):
        t = now(); out = []
        for i in left:
            it = items[i]
            if it["s"] != slots or bool(it["tag"]) != mem or it["gate"] > cur[0]: continue
            if it["after"] >= 0 and (it["after"] not in mf_pos or t - mf_pos[it["after"]] < 8): continue
            if all(d in done and t - done[d] >= max(it["dist"], 1 if items[d]["s"] == 2 else 0) for d in it["deps"]): out.append(i)
        return out
    def take(slots, mem=False):
        r = ready(slots, mem)
        if not r: return False
        i = min(r, key=lambda k: (items[k]["dl"], items[k].get("pr", 0), k))
        if mem:
            *pre, ins = items[i]["t"].split("\n")
            for p in pre: e(p)
            if x_nosend: ins = f"buffer_load_dword v62, v{vZero}, {sK}, {sKb} offen"
            a.vmem(ins, items[i]["tag"])
        else:
            for ln in items[i]["t"].split("\n"): a.lines.append(ln if ln.endswith(":") else "    " + ln.strip())
        done[i] = now(); left.remove(i); return True

    sync_step = {8*u - LA: u for u in range(1, 31)}; sync_step[248 - LA2] = 31
    ldsx = {}; waits = {}
    def put(n, op):
        if x_nolds and "b128" in op[0]: op = (f"ds_read_b32 v62, v{vSt}", op[1])
        ldsx.setdefault(n, []).append(op)
    def blk(jq, m): return (jq * 3 + m) * 1024
    for (x, n0, tag) in ((3, 175, "W3"), (1, 223, "W1")):
        ops = [(f"ds_write_b128 v{vWr}, {ar(OA(x, jq, m))} offset:{blk(jq, m)}", tag) for jq in range(4) for m in range(3)]
        roomy = late3 if x == 3 else xbar
        blocks = [(jq, m) for jq in range(4) for m in range(3)]
        for k, op in enumerate(ops):
            n = n0 + (int(k * wpace) if roomy else min(k, 10))
            if w64:
                jq, m = blocks[k]
                for h in range(2): put(n, (f"ds_write_b64 v{vWr}, {ar(OA(x, jq, m) + 2*h, 2)} offset:{blk(jq, m) + 8*h}", tag))
            else: put(n, op)
        if x == 3:
            for m in range(3): put(n0 + 5 + m, (f"ds_write_b32 v{vSt}, a{Lr(m)} offset:{256 + 4*m}", tag))
    if x_fakeP:
        for k in range(24):
            ldsx.setdefault(72 + 4 * k, []).append((f"ds_write_b128 v{vWr}, v[64:67] offset:{1024 * (k % 12)}", "fk"))
            ldsx.setdefault(82 + 4 * k, []).append((f"ds_read_b128 a[232:235], v{vSb} offset:{1024 * (k % 12)}", "fk"))
    put(n_wr, (f"ds_write_b96 v{vSt}, v[16:18]", "Wr"))
    put(146, (f"ds_read_b96 v[40:42], v{vSs}", "Rr")); waits[148] = "Rr"
    k = 0
    r3 = 194 if late3 else 186
    put(r3, (f"ds_read_b96 v[36:38], v{vSs} offset:256", "B3a"))
    for (m, p) in msgs:
        for jj in range(2):
            k += 1
            put(r3 + k // rpace, (f"ds_read_b128 {vr(B3(2*p+jj, m))}, v{vSb} offset:{blk(2*p+jj, m)}", "B3a" if k <= 6 else "B3"))
    ga, gb = r3 + 6 // rpace + 1, r3 + 12 // rpace + 1 + gb_shift
    waits[ga] = "B3a"; waits[gb] = "B3"
    k = 0
    for (m, p) in msgs:
        for jj in range(2):
            put(max(240, xbar) + k // 2, (f"ds_read_b128 {vr(B1(2*p+jj, m))}, v{vSb} offset:{blk(2*p+jj, m)}", "B1")); k += 1
    vmx = {non_at: [(f"global_load_dword v{vNon}, v{vDbg}, {sDbg} sc1", "nonce")]}
    if OUT and not x2:
        vmx[76] = [(f"buffer_store_dword v62, v{vZero}, {sW}, {sPin} offen sc1", "idw")]
        vmx[150] = [(f"buffer_load_dword v{vId}, v{vZero}, {sW}, {sIn} offen sc1", "idr")]
    for n, (srd, off) in zip(pre_at, ((sW, sInS), (sW, sIn), (sW, sPin), (sO, sRow))):
        if n and not (OUT and off in (sIn, sPin)): vmx[n] = [(f"buffer_load_dword v{vDum}, v{vZero}, {srd}, {off} offen sc1", "pre")]
    vPf = 59
    if n_fill: vmx.setdefault(n_fill, []).append((f"buffer_load_dword v62, v{vPg}, {sO}, {sPo} offen", "fill"))
    for n in repf:
        vmx.setdefault(n, []).append((f"global_load_dword v{vDum}, v{vPf}, s[36:37]", "code"))
    rstat = [(f"buffer_load_dwordx4 v[40:43], v{vQ16}, {sW}, {sInS} offen sc1", "rstat"),
             (f"buffer_load_dwordx4 v[44:47], v{vQ16}, {sW}, {sInS} offen offset:256 sc1", "rstat")]
    rdata = [(f"buffer_load_dwordx4 {vr(G(g) if TAG else RC(g))}, v{vLane16}, {sW}, {sIn if g < 4 else sIn2} offen offset:{1024*(g & 3)} {xld}", f"rc{g}")
             for g in range(8 if TAG else 6)]
    if OUT:
        rdata = [(f"s_add_u32 {sTx}, {sOo}, {4096*g}\n    buffer_load_dwordx4 {vr(RC(g))}, v{vXa}, {sO}, {sTx} offen {xld}", f"rc{g}") for g in range(6)]
    if TAG:
        for k, op in enumerate(rstat + rdata): vmx.setdefault(n_recv + k // 2, []).append(op)
    else:
        vmx[n_poll] = list(rstat)
        vmx[8 * n_flag - LA] = [(op, "flag") for op in stat_stores]
    def fixed(n):
        u_next = ((n + LA) >> 3) + T
        dma = 2 if ((n & 1 if rate == 2 else 1 <= (n + LA) & 7 <= 4) and u_next < 32 and not x_nodma) else 0
        return len(rd_at.get(n, [])) + len(ldsx.get(n, [])) + dma + 2 * len(vmx.get(n, [])) + (1 if n in sync_step else 0)
    def overdue(n, gi):
        g = g0[n] + gi
        rel = {}
        for i in left:
            it = items[i]
            rel[i] = it["gate"] <= n and (it["after"] < 0 or it["after"] in mf_pos) and all(d in done or rel[d] for d in it["deps"])
        for D in sorted({items[i]["dl"] for i in left if rel[i]}):
            dem = sum(items[i]["s"] for i in left if items[i]["dl"] <= D)
            sup = 2 * max(0, min(D, g0[256]) - g)
            k = n + 1
            while k < 256 and g0[k] <= D: sup -= fixed(k); k += 1
            if dem > sup:
                if not even or extra_used[0] * max(1, D - g) < dem - sup + extra_used[0]: return True
        return False
    extra_used = [0]
    def unit_sync(u):
        while any(it[0] == f"U{u}" for it in pending): dma_emit(pending.pop(0))
        lg = {(n_wr + LA) // 8 + 1: "Wr", 25 if late3 else 24: "W3", 99 if xbar else 30: "W1"}.get(u)
        vm = ([] if x_nodma and u >= nxt[0] else [f"U{u}"]) + (["send"] if u == (30 if TAG else n_flag) else [])
        if vm or lg: a.wait(vm=vm or None, lg=lg)
        if OUT and not x2 and u == n_flag:
            e(f"s_cmp_lg_u32 {sDiff}, 0"); e("s_cbranch_scc1 L_wb")
            a.label("L_wbdone")
        e("s_barrier")
        if dual:
            if tl and tlb and u & 3 == 3:
                k = len(tls); tls.extend([k, k + 1])
                e(f"s_memrealtime s[{64+2*k}:{65+2*k}]"); e(f"s_memtime s[{66+2*k}:{67+2*k}]")
        elif u & 1 and u > 1: stamp(bar=True)
        done_ring = max([ridx(w) for w in range(u - 1) if not 16 <= w < 16 + nv] + [-1])
        here = u if u < 16 else max(15, ridx(u)) if u >= 16 + nv else 15
        while nxt[0] <= 31 and not x_nodma:
            if 16 <= nxt[0] < 16 + nv: nxt[0] = 16 + nv
            if ridx(nxt[0]) > min(done_ring + NS, here + (tramp[u] if u < len(tramp) else T if u < 16 or not nv else 99)): break
            pending.extend(dma_list(nxt[0])); nxt[0] += 1
        if u in vat and not x_nodma: pending.extend(dma_list(16 + vat.index(u)))
    def step(n):
        cur[0] = n
        a.label(f"L_s{n}")
        if n in sst: stamp(force=True)
        if n + 1 in repf:
            e(f"v_add_u32 v{vPf}, L_s{min(255, n + 9)} - L_pc, v{vPg}"); e(f"v_min_u32 v{vPf}, L_nonce - L_pc, v{vPf}")
        rds = list(rd_at.get(n, [])); lx = list(ldsx.get(n, [])); vx = list(vmx.get(n, []))
        mf = mfmas(n); k = len(mf)
        lft = (7 - ((n + LA) & 7)) // 2 + 1
        due = bool(pending) and bool(n & 1 or len(pending) > lft or rate == 1)
        both = len(rds) >= 2 and (due or vx or len(rds) > 2 or ready(2, True) or len(ready(2)) >= 2 or not ready(1))
        for gi, ins in enumerate(mf):
            e(ins); mf_pos[g0[n] + gi] = now()
            used = 0; nfree = 0
            if gi == k - 1 and n < LAST:
                a.wait(lg=f"F{n+1}"); nfree += 1
            if gi == 0 and n in waits:
                a.wait(lg=waits[n]); nfree += 1
            if gi == 0 and xbar and n == xbar:
                a.wait(lg="W1"); e("s_barrier"); nfree += 2
            if gi == 0 and n in sync_step:
                unit_sync(sync_step[n]); nfree += 2
            if gi < 2 and pending and pending[0][1] and (gi == 0 or not due):
                pre = pending[0][1]
                c = len(pre) if due else 1
                for p in pre[:c]: e(p); nfree += 1
                del pre[:c]
            used += max(0, nfree - 1)
            if gi < 2:
                c = (len(rds) + 1) // 2 if len(rds) > 2 and gi == 0 else (len(rds) if both or gi == 1 else 1)
                for x in rds[:c]: a.lds(*x); used += 1
                del rds[:c]
            if lx and gi >= 1:
                for _ in range(1 if gi < k - 1 and len(lx) <= k - gi else (len(lx) + (k - 1 - gi)) // (k - gi)):
                    a.lds(*lx.pop(0)); used += 1
            if gi == 1 and due and pending and not pending[0][1]:
                dma_emit(pending.pop(0)); used += 2
            elif vx and gi >= 1:
                a.vmem(*vx.pop(0)); used += 2
            elif used < 2 and take(2, True): used += 2
            while used < 2 and left:
                if take(3): used += 2
                elif used == 0 and take(2): used += 2
                elif take(1): used += 1
                else: break
            extra_used[0] = 0
            while left and overdue(n, gi):
                if take(3) or take(1): extra_used[0] += 1
                elif take(2) or take(2, True): extra_used[0] += 2
                else: break
            late = [items[i] for i in left if items[i]["dl"] <= g0[n] + gi]
            assert not late, (n, gi, late[:3])
        assert not lx and not vx and not rds, n

    def nonce_check():
        e(f"v_cmp_eq_u32 vcc, 0, v{vNon}"); e("s_cbranch_vccnz L_nonce")
        a.label("L_havenonce")
    for s in range(8):
        for m in range(3):
            a.lds(f"ds_read_b128 {ar(Q(m, s))}, v{35 + (s & 3)} offset:{m*8192 + 256*(s >> 2)}", "Qf")
        if s < LA: a.lds(*rd_list(s)[0])
        if qdma and pending and s & 1: dma_emit(pending.pop(0))
    a.wait(lg="all")
    stamp()
    for n in range(128):
        if n % 8 == 0: a.c(f"unit {n >> 3}")
        step(n)
        if OUT and not x2 and n == 73:
            a.wait(vm="nonce"); nonce_check()
            e(f"v_xor_b32 v62, {sXcc}, v{vNon}")
    assert not left
    a.c("row max over the last tile, reference check")
    stamp()
    if not x_nomax: e("s_nop 6")
    for m in range(0 if x_nomax else 3):
        e(f"v_max3_f32 v{vR[m]}, v{vR[m]}, v{S(15,m,0)}, v{S(15,m,1)}"); e(f"v_max3_f32 v{vR[m]}, v{vR[m]}, v{S(15,m,2)}, v{S(15,m,3)}")
    if x_nomax:
        for kp in chk_ids: a.label(f"L_back{kp}")
    for tx in ([] if x_nomax else chk_text(k0)):
        for ln in tx.split("\n"): a.lines.append(ln if ln.endswith(":") else "    " + ln.strip())
    kk = len(items)
    first_use_ov = {jq: min(n for n in range(128, 256) if vstep(n)[0] == 2 and vstep(n)[3] == jq) for jq in range(4)}
    for kp in range(k0, 8):
        p_items(kp, [[add("s_nop 0", 1, [], g0[127] + m, g0[140])] if x_nomax and kp == 7 else [] for m in range(3)], [g0[min(first_use[kp], first_use_ov.get(kp, 999))] + m - 3 for m in range(3)])
    release(kk)

    fo = [36, 38, 62]; fs = [37, 39, 63]; fb = [40, 41, 42]
    tags = [43, 47] + ([G(g) + 3 for g in range(8)] if TAG else [])
    def tag_check():
        if x2:
            e(f"v_xor_b32 v62, v43, v{vNon}"); e("v_xor_b32 v63, v47, v35"); e("v_or_b32 v62, v62, v63"); e("v_cmp_ne_u32 vcc, 0, v62")
            return
        for (op, d) in (("v_max3_u32", 62), ("v_min3_u32", 63)):
            e(f"{op} v{d}, v{vNon}, v{tags[0]}, v{tags[1]}")
            for k in range(2, len(tags), 2): e(f"{op} v{d}, v{d}, v{tags[k]}, v{tags[k+1]}")
        e("v_cmp_ne_u32 vcc, v62, v63")
    def check():
        a.c("partner's partial sums: tags, combination weights")
        a.wait(vm="rc7" if TAG else "rstat", lg="B1")
        stamp()
        tag_check()
        e("s_branch L_retry" if force_slow and x2 else "s_cbranch_vccnz L_retry")
        a.label("L_got")
        if OUT and not x2:
            e(f"s_cmp_lg_u32 {sDiff}, 0"); e("s_cbranch_scc1 L_inv")
        stamp()
        if not TAG:
            for op in rdata: a.vmem(f"buffer_load_dword v62, v{vZero}, {sK}, {sKb} offen" if x_norecv else op[0].replace(xld, fld) if OUT else op[0], op[1])
            if OUT: a.label("L_invdone")
        k0 = len(items)
        for m in range(3):
            i0 = add(f"v_max_f32_e64 v{fo[m]}, v{28+m}, v{40+m}", 1)
            i1 = add(f"v_sub_f32_e64 v{fs[m]}, v{28+m}, v{fo[m]}", 1, [i0])
            i2 = add(f"v_sub_f32_e64 v{fb[m]}, v{40+m}, v{fo[m]}", 1, [i0])
            i1 = add(f"v_exp_f32_e64 v{fs[m]}, v{fs[m]}", 2, [i1])
            i2 = add(f"v_exp_f32_e64 v{fb[m]}, v{fb[m]}", 2, [i2])
            i3 = add(f"v_mul_f32_e64 v{fo[m]}, v{fs[m]}, v{32+m}", 1, [i1, i2])
            i3 = add(f"v_fma_f32 v{fo[m]}, v{fb[m]}, v{44+m}, v{fo[m]}", 1, [i3])
            i3 = add(f"v_rcp_f32_e64 v{44+m}, v{fo[m]}", 2, [i3])
            i4 = add(f"v_mul_f32_e64 v{fs[m]}, v{fs[m]}, v{44+m}", 1, [i3])
            add(f"v_mul_f32_e64 v{fb[m]}, v{fb[m]}, v{44+m}", 1, [i3])
            i5 = add(f"v_mul_f32_e64 v{fo[m]}, v{fs[m]}, v{phi_o[m]}", 1, [i4])
            i6 = add(f"v_mul_f32_e64 v{fs[m]}, v{fs[m]}, v{phi_s[m]}", 1, [i5])
            for jq in range(4):
                for h in (0, 2): late.append((m, jq, h))
        release(k0)
    late = []
    for n in range(128, 256):
        if n % 8 == 0: a.c(f"unit {n >> 3}")
        if n == 148: send_items()
        step(n)
        if n == 178 and (x2 or not OUT):
            if non_at > 140: a.wait(vm="nonce")
            nonce_check()
        if n == 181 and OUT and not x2:
            a.c("same XCD as the partner workgroup?")
            a.wait(vm="idr")
            e(f"v_xor_b32 v{vId}, v{vId}, v{vNon}"); e("s_nop 0"); e(f"v_readfirstlane_b32 {sDiff}, v{vId}")
            e(f"s_xor_b32 {sDiff}, {sDiff}, {sXcc}")
            if force_slow: e(f"s_mov_b32 {sDiff}, 1")
        if n == 192: stamp()
        if n == send_dl: a.c("partial sums sent"); stamp()
        if n == n_chk: check()
    assert not pending
    a.c("final combine")
    stamp()
    cur[0] = 256
    while left:
        if not (take(1) or take(2)): e("s_nop 0")
    order = [0, 2, 4, 1, 3, 5] if TAG else range(6)
    if ltr:
        e(f"s_mul_i32 s38, {sMh}, {slot_of(29) - slot_of(28)}"); e(f"s_add_u32 s38, s38, {slot_of(28)}"); e(f"s_add_u32 s38, s38, {sRing}")
        e("v_and_b32 v1, 15, v0"); e("v_and_b32 v2, 63, " + f"v{vOut}"); e("v_and_b32 v3, 7, v0"); e("v_lshlrev_b32 v3, 4, v3")
        e("v_xor_b32 v2, v2, v3"); e("v_lshl_add_u32 v2, v1, 7, v2"); e(f"v_add_u32 v{vWr}, s38, v2"); e(f"v_xor_b32 v25, 64, v{vWr}")
        e("v_lshrrev_b32 v1, 3, v0"); e("v_lshlrev_b32 v2, 4, v1"); e("v_xor_b32 v2, v2, v3"); e("v_lshl_add_u32 v2, v1, 7, v2"); e(f"v_add_u32 v{vSb}, s38, v2")
        if t64:
            e("v_lshrrev_b32 v1, 4, v0"); e("v_lshlrev_b32 v1, 3, v1"); e("v_xor_b32 v1, v1, v3"); e(f"v_lshlrev_b32 v2, 3, v{vQ16}"); e("v_add3_u32 v1, v1, v2, s38")
            for j in range(1, 4): e(f"v_xor_b32 v{1+j}, {32*j}, v1")
    def own_part(i):
        m, p = msgs[i]; fp = vr(fo[m], 2)
        for jj in range(0 if x_fakeP else 2):
            o = B1(2*p + jj, m)
            for h in (0, 2): e(f"v_pk_mul_f32 {vr(o + h, 2)}, {vr(o + h, 2)}, {fp} op_sel:[0,1] op_sel_hi:[1,1]")
        for jj in range(2):
            o = B1(2*p + jj, m)
            for h in (0, 2): e(f"v_pk_fma_f32 {vr(o + h, 2)}, {vr(OV(2*p + jj, m) + h, 2)}, {fp}, {vr(o + h, 2)} op_sel_hi:[1,0,1]")
    if not TAG:
        for i in (0, 2, 4, 1, 3, 5): own_part(i)
    if ltr:
        a.c("output rows are transposed through LDS so that every store writes whole 128-byte rows")
        vTw, vTr = vWr, vSb
        def msg(i):
            m, p = msgs[i]
            a.wait(vm=f"rc{i}")
            if i == 0: stamp()
            u0 = [PK(2 * (i & 1)), PK(2 * (i & 1) + 1)]
            for jj in range(2):
                for h in range(2):
                    src = RC(i) + 2 * jj + h
                    e(f"v_lshlrev_b32 v{u0[jj] + 2*h}, 16, v{src}"); e(f"v_and_b32 v{u0[jj] + 2*h + 1}, {sHi}, v{src}")
            bp, hi = pair(fb[m])
            for jj in range(2):
                o = B1(2*p + jj, m)
                for h in (0, 2): e(f"v_pk_fma_f32 {vr(o + h, 2)}, {vr(u0[jj] + h, 2)}, {bp}, {vr(o + h, 2)} op_sel:[0,{hi},0] op_sel_hi:[1,{hi},1]")
            x = OV(2*p, m)
            for jj in range(2):
                o = B1(2*p + jj, m)
                e(f"v_cvt_pk_bf16_f32 v{x + 2*jj}, v{o}, v{o+1}"); e(f"v_cvt_pk_bf16_f32 v{x + 2*jj + 1}, v{o+2}, v{o+3}")
            if t64:
                for jj in range(2): a.lds(f"ds_write_b64 v{1 + 2*p + jj}, {vr(x + 2*jj, 2)} offset:{2048*m}", f"tw{i}")
                return
            e(f"s_add_u32 s38, {sOo}, {4096*i}"); e("s_nop 0")
            e(f"v_permlane16_swap_b32 v{x}, v{x+2}"); e(f"v_permlane16_swap_b32 v{x+1}, v{x+3}")
            a.lds(f"ds_write_b128 v{vTw if p == 0 else 25}, {vr(x)} offset:{2048*m}", f"tw{i}")
        def rows(m):
            for h in range(2): a.lds(f"ds_read_b128 {vr(OV(2*h + 1, m))}, v{vTr} offset:{2048*m + 1024*h}", f"tr{m}{h}")
        def out(m):
            for h in range(2):
                a.wait(lg=f"tr{m}{h}")
                e(f"s_add_u32 s39, {sOo}, {4096*(2*m + h)}")
                a.vmem(f"buffer_store_dwordx4 {vr(OV(2*h + 1, m))}, v{vXa}, {sO}, s39 offen {opol}", "out")
        if tord == 0: msg(0); msg(1); rows(0); msg(2); out(0); msg(3); rows(1); msg(4); out(1); msg(5); rows(2); out(2)
        elif tord == 1: msg(0); msg(1); rows(0); msg(2); msg(3); rows(1); out(0); msg(4); msg(5); rows(2); out(1); out(2)
        else: msg(0); msg(1); msg(2); rows(0); msg(3); out(0); msg(4); rows(1); msg(5); rows(2); out(1); out(2)
        order = []
    elif one_swap:
        sOm = [sOo, "s38", "s39"]
        e(f"s_add_u32 s38, {sOo}, 8192"); e(f"s_add_u32 s39, {sOo}, 16384")
        fin = []
        for i in range(6):
            m, p = msgs[i]
            a.wait(vm=f"rc{i}")
            if i == 0: stamp()
            u0 = [PK(2 * (i & 1)), PK(2 * (i & 1) + 1)]
            un = []
            for jj in range(2):
                for h in range(2):
                    src = RC(i) + 2 * jj + h
                    un += [f"v_lshlrev_b32 v{u0[jj] + 2*h}, 16, v{src}", f"v_and_b32 v{u0[jj] + 2*h + 1}, {sHi}, v{src}"]
            for o_ in un[:2]: e(o_)
            for o_ in fin[:2]: e(o_)
            if fin: a.vmem(fin[2], "out")
            for o_ in un[2:]: e(o_)
            bp, hi = pair(fb[m])
            for jj in range(2):
                o = B1(2*p + jj, m)
                for h in (0, 2): e(f"v_pk_fma_f32 {vr(o + h, 2)}, {vr(u0[jj] + h, 2)}, {bp}, {vr(o + h, 2)} op_sel:[0,{hi},0] op_sel_hi:[1,{hi},1]")
            x = OV(2*p, m)
            for jj in range(2):
                o = B1(2*p + jj, m)
                e(f"v_cvt_pk_bf16_f32 v{x + 2*jj}, v{o}, v{o+1}"); e(f"v_cvt_pk_bf16_f32 v{x + 2*jj + 1}, v{o+2}, v{o+3}")
            fin = [f"v_permlane16_swap_b32 v{x}, v{x+2}", f"v_permlane16_swap_b32 v{x+1}, v{x+3}",
                   f"buffer_store_dwordx4 {vr(x)}, v{vXa if x_linst else vOut}, {sO}, {sOm[m]} offen offset:{(0 if x_linst else 64)*p} {opol}"]
        e("s_nop 1")
        e(fin[0]); e(fin[1]); a.vmem(fin[2], "out")
        order = []
    for i in order:
        m, p = msgs[i]
        if TAG: own_part(i)
        else: a.wait(vm=f"rc{i}")
        if i == 0 and not TAG: stamp()
        u0 = [G(8 + 2 * (i & 1)), G(9 + 2 * (i & 1))] if TAG else [PK(2 * (i & 1)), PK(2 * (i & 1) + 1)]
        for jj in range(2):
            for h in range(2):
                t = 4 * i + 2 * jj + h
                src = G(t // 3) + t % 3 if TAG else RC(i) + (t & 3)
                e(f"v_lshlrev_b32 v{u0[jj] + 2*h}, 16, v{src}"); e(f"v_and_b32 v{u0[jj] + 2*h + 1}, {sHi}, v{src}")
        bp, hi = pair(fb[m])
        for jj in range(2):
            o = B1(2*p + jj, m)
            for h in (0, 2): e(f"v_pk_fma_f32 {vr(o + h, 2)}, {vr(u0[jj] + h, 2)}, {bp}, {vr(o + h, 2)} op_sel:[0,{hi},0] op_sel_hi:[1,{hi},1]")
        x = OV(2*p, m)
        for jj in range(2):
            o = B1(2*p + jj, m)
            e(f"v_cvt_pk_bf16_f32 v{x + 2*jj}, v{o}, v{o+1}"); e(f"v_cvt_pk_bf16_f32 v{x + 2*jj + 1}, v{o+2}, v{o+3}")
        e(f"s_add_u32 s38, {sOo}, {8192*m}")
        e("s_nop 0")
        e(f"v_permlane32_swap_b32 v{x}, v{x+2}"); e(f"v_permlane32_swap_b32 v{x+1}, v{x+3}")
        e("s_nop 0")
        e(f"v_permlane16_swap_b32 v{x}, v{x+2}"); e(f"v_permlane16_swap_b32 v{x+1}, v{x+3}")
        a.vmem(f"buffer_store_dwordx4 {vr(x)}, v{vOut}, {sO}, s38 offen offset:{64*p} {opol}", "out")
    if tl:
        stamp()
        e("s_waitcnt vmcnt(0)")
        stamp()
        e("s_waitcnt lgkmcnt(0)")
        e("s_lshl_b32 s38, s2, 2"); e("s_add_u32 s38, s38, s3"); e("s_lshl_b32 s38, s38, 6"); e("s_add_u32 s38, s38, 0x1010000")
        e("v_mov_b32 v8, s38")
        for k in tls[:16]:
            e(f"v_mov_b32 v4, s{64+2*k}")
            e(f"global_store_dword v8, v4, s[58:59] offset:{4*k}")
    if spin:
        e("s_waitcnt vmcnt(0)")
        a.label("L_spin")
        e("s_memrealtime s[44:45]"); e("s_waitcnt lgkmcnt(0)")
        e("s_sub_u32 s44, s44, s40"); e(f"s_cmp_lt_u32 s44, {spin*100}"); e("s_cbranch_scc1 L_spin")
    if stamps:
        e("s_waitcnt vmcnt(0)")
        e("s_memrealtime s[42:43]")
        e("s_lshl_b32 s38, s2, 2"); e("s_add_u32 s38, s38, s3"); e("s_lshl_b32 s38, s38, 4"); e("s_add_u32 s38, s38, 0x1000000")
        e("s_waitcnt lgkmcnt(0)")
        e("v_mov_b32 v4, s40"); e("v_mov_b32 v5, s41"); e("v_mov_b32 v6, s42"); e("v_mov_b32 v7, s43"); e("v_mov_b32 v8, s38")
        e("s_mov_b64 exec, 1")
        e("global_store_dwordx4 v8, v[4:7], s[58:59]")
    e("s_endpgm")
    a.c("slow paths: the nonce or the partner's data was not there yet")
    a.label("L_nonce")
    e("s_mov_b32 s39, 0x100000")
    a.label("L_nonce2")
    e(f"global_load_dword v{vNon}, v{vDbg}, {sDbg} sc1")
    e("s_sub_u32 s39, s39, 1"); e("s_cmp_eq_u32 s39, 0")
    e("s_waitcnt vmcnt(0)")
    e("s_cbranch_scc1 L_havenonce")
    e(f"v_cmp_eq_u32 vcc, 0, v{vNon}"); e("s_cbranch_vccnz L_nonce2")
    e("s_branch L_havenonce")
    if x2:
        a.label("L_retry")
        e("s_mov_b32 s39, 0x80000")
        a.label("L_retry2")
        for op, _ in rstat: e(op)
        e("s_sub_u32 s39, s39, 1"); e("s_cmp_eq_u32 s39, 0")
        e("s_waitcnt vmcnt(0)")
        e("s_cbranch_scc1 L_got")
        e(f"v_xor_b32 v62, v43, v{vNon}"); e(f"v_xor_b32 v63, v47, v{vNon}"); e("v_lshlrev_b32 v63, 4, v63"); e("v_or_b32 v62, v62, v63")
        e("v_cmp_ne_u32 vcc, 0, v62"); e("s_cbranch_vccnz L_retry2")
        if not force_slow: e("v_cmp_ne_u32 vcc, v47, v35"); e("s_cbranch_vccz L_got")
        a.c("partner on another XCD: release the own partial sums, second hand-off word, acquire")
        e("buffer_wbl2 sc1"); e("s_waitcnt vmcnt(0)")
        e(f"buffer_store_dword v{vNon}, v{vZero}, {sW}, {sPin} offen sc1")
        e("s_mov_b32 s39, 0x80000")
        a.label("L_rel")
        e(f"buffer_load_dword v62, v{vZero}, {sW}, {sIn} offen sc1")
        e("s_sub_u32 s39, s39, 1"); e("s_cmp_eq_u32 s39, 0")
        e("s_waitcnt vmcnt(0)")
        e("s_cbranch_scc1 L_inv")
        e(f"v_cmp_ne_u32 vcc, v62, v{vNon}"); e("s_cbranch_vccnz L_rel")
        a.label("L_inv")
        e("buffer_inv sc1"); e("s_waitcnt vmcnt(0)")
        for op in rdata: e(op[0])
        e("s_branch L_invdone")
    else:
        a.label("L_retry")
        e("s_mov_b32 s39, 0x80000")
        a.label("L_retry2")
        for op, _ in rstat + (rdata if TAG else []): e(op)
        e("s_sub_u32 s39, s39, 1"); e("s_cmp_eq_u32 s39, 0")
        e("s_waitcnt vmcnt(0)")
        e("s_cbranch_scc1 L_got")
        tag_check()
        e("s_cbranch_vccnz L_retry2")
        e("s_branch L_got")
    if OUT and not x2:
        a.c("slow paths: partner on another XCD (release / acquire)")
        a.label("L_wb")
        e("s_waitcnt vmcnt(0)"); e("buffer_wbl2 sc1"); e("s_waitcnt vmcnt(0)"); e("s_branch L_wbdone")
        a.label("L_inv")
        e("buffer_inv sc1"); e("s_waitcnt vmcnt(0)")
        for op in rdata: e(op[0])
        e("s_branch L_invdone")
    a.c("slow path: raise the softmax reference to the running max and rescale the finished P tiles")
    for kp in chk_ids:
        a.label(f"L_bump{kp}")
        e(f"s_mov_b32 s39, {kp}")
        if kp < k0: e("s_branch L_bump")
    a.label("L_bump")
    for m in range(3):
        e(f"v_mov_b32 v32, v{vR[m]}"); e(f"v_mov_b32 v33, v{vR[m]}"); e("s_nop 1")
        e("v_permlane32_swap_b32 v32, v33"); e("v_max_f32 v32, v32, v33"); e("v_mov_b32 v33, v32"); e("s_nop 1")
        e("v_permlane16_swap_b32 v32, v33"); e("v_max_f32 v32, v32, v33")
        e(f"v_mul_f32 v32, {sC}, v32"); e("v_ceil_f32 v32, v32")
        e(f"v_sub_f32 v{28+m}, v{vM[m]}, v32"); e(f"v_mov_b32 v{vM[m]}, v32"); e(f"v_exp_f32 v{28+m}, v{28+m}")
    if l1:
        e("s_nop 7")
        for m in range(3):
            e(f"v_accvgpr_read_b32 v32, a{Lr(m)}"); e(f"v_mul_f32 v32, v32, v{28+m}"); e(f"v_accvgpr_write_b32 a{Lr(m)}, v32")
    for kp in chk_ids[:-1]:
        e(f"s_cmp_eq_u32 s39, {kp}"); e(f"s_cbranch_scc1 L_fix{kp-1}")
    for kp in range(k0 - 1, -1, -1):
        a.label(f"L_fix{kp}")
        for m in range(3):
            for r in range(4):
                x = S(2*kp, m, r)
                e(f"v_lshlrev_b32 v32, 16, v{x}"); e(f"v_and_b32 v33, {sHi}, v{x}")
                e(f"v_mul_f32 v32, v32, v{28+m}"); e(f"v_mul_f32 v33, v33, v{28+m}")
                e(f"v_cvt_pk_bf16_f32 v{x}, v32, v33")
    e("s_nop 1")
    for kp in chk_ids[:-1]:
        e(f"s_cmp_eq_u32 s39, {kp}"); e(f"s_cbranch_scc1 L_back{kp}")
    e(f"s_branch L_back{k0}")
    a.label("L_end")
    e("s_endpgm")
    if alg:
        L = a.text().split("\n")
        k_a = next(i for i, x in enumerate(L) if x == "L_s0:"); k_b = next(i for i, x in enumerate(L) if "slow paths: the nonce" in x)
        a.lines = align.align(L, k_a, k_b, alg == 2)
    return kernel_file(a.text(), notes=NOTES, sgpr=100 if tl else 64)

def emit(variants, tl_only=False):
    names = []
    for n, kw in variants.items():
        src = gen(**kw)
        L = src.split("\n")
        for b in hazard.check(L): print("HAZARD", n, b)
        ks = [next(i for i, x in enumerate(L) if key in x) for key in ("; unit 0", "row max over", "; unit 16", "; unit 24", "final combine", "slow paths")]
        print(n, "est cycles: pro", hazard.estimate(L[:ks[0]]), "ph1", hazard.estimate(L[ks[0]:ks[1]]), "bnd", hazard.estimate(L[ks[1]:ks[2]]),
              "2a", hazard.estimate(L[ks[2]:ks[3]]), "2b", hazard.estimate(L[ks[3]:ks[4]]), "tail", hazard.estimate(L[ks[4]:ks[5]]))
        if not tl_only:
            open(f"cdna_kernels/{n}.s", "w").write(src)
            build_co(gen(stamps=True, **kw), f"bench/{n}")
        build_co(gen(stamps=True, tl=True, **kw), f"bench/{n}_tl")
        build_co(gen(stamps=True, tl=True, tlb=True, **kw), f"bench/{n}_tb")
        names.append(n)
    for sfx in ("", "_tl", "_tb"): print(" ".join(n + sfx + ".co" for n in names))
    print(str(["bench/host"] + [f"bench/{n}{sfx}.co" for n in names for sfx in (("_tl", "_tb") if tl_only else ("", "_tl", "_tb"))]).replace("'", '"'))
    print(str([f"cdna_kernels/{n}.s" for n in names]).replace("'", '"'))

PL = {3: [0], 4: [1, 2], 5: [3, 4], 6: [5]}
FINAL = dict(even=True, one_swap=True, mode="out", fld="sc1", x2=True, l1=True, n_wr=139, pro=2, ltr=True, t64=True, tord=1, plan=PL, alg=1, pre_at=(), tramp=(2,)*6 + (3,)*3, prio=True, gb_shift=1)

if __name__ == "__main__":
    emit({"final": FINAL})
```
